```python
import torch

def _softmax(x, axis=-1):
    return torch.softmax(x, dim=axis)
def _gelu(x):
    return torch.nn.functional.gelu(x, approximate="tanh")
def _silu(x):
    return torch.nn.functional.silu(x)
def _sigmoid(x):
    return torch.sigmoid(x)
def _layernorm(x, axis=-1, eps=1e-5):
    m = x.mean(dim=axis, keepdim=True)
    v = x.var(dim=axis, keepdim=True, unbiased=False)
    return (x - m) / torch.sqrt(v + eps)
def _scatter_add(tgt, idx, src, axis=0):
    return tgt.clone().index_add_(axis, idx, src)
def _segment_sum(src, seg, n):
    out = torch.zeros((n,) + src.shape[1:], dtype=src.dtype)
    return out.index_add_(0, seg, src)
def _pad(x, pw):
    flat = tuple(v for pair in reversed(pw) for v in pair)
    return torch.nn.functional.pad(x, flat)

kernel_name = 'standalone__weight_only_int_omniquant__prompt'

def setup_inputs():

    _w = (lambda a: (lambda t: t.to(torch.bfloat16) if t.is_floating_point() else t)(torch.as_tensor(a)))
    B, S, D, F = 1, 2048, 1024, 3584
    bits = 8
    G = 32 if 32 > 0 else D
    D = (D // G) * G
    ng = D // G
    qmax = (1 << bits) - 1
    qw = torch.randint(0, qmax + 1, (D, F)).to(torch.int32)
    scales = (torch.abs((lambda *s: torch.randn(*s, dtype=torch.bfloat16) * 0.05)(ng, F)) * 0.05 + 0.01).to(float)
    zeros = torch.randint(0, qmax + 1, (ng, F)).to(float)
    act_scale = (torch.abs((lambda *s: torch.randn(*s, dtype=torch.bfloat16) * 0.05)(D)) * 0.5 + 0.5).to(float)
    return {
        "x": _w((lambda *s: torch.randn(*s, dtype=torch.bfloat16) * 0.05)(B, S, D)),
        "qw": _w(qw),
        "scales": _w(scales),
        "zeros": _w(zeros),
        "act_scale": _w(act_scale),
    }

def reference(x, qw, scales, zeros, act_scale):
    B, S, D = x.shape
    ng, F = scales.shape
    G = D // ng
    s = (lambda x, n, axis: torch.repeat_interleave(x, n, dim=axis))(scales, G, axis=0)
    z = (lambda x, n, axis: torch.repeat_interleave(x, n, dim=axis))(zeros, G, axis=0)
    w = ((lambda x, dt: x.to(dt))(qw, x.dtype) - z) * s
    xs = x * (lambda x, dt: x.to(dt))(act_scale, x.dtype)
    return torch.einsum("bsd,df->bsf", xs, w)
```

```python
import sys
KN = "standalone__weight_only_int_omniquant__prompt_kernel"
HEADER = open("standalone__weight_only_int_omniquant__prompt.s.ref").read().split("; Override launch")[0]

M, K, N = 2048, 1024, 3584
opt = dict(mfma=1, deq=1, stamps=0, prio=1, loadA=1, loadB=1, dsr=1, store=1, barpos=2)
for a in sys.argv[2:]:
    k, v = a.split("="); opt[k] = int(v)

L = []
def I(s): L.append("    " + s)
def C(s): L.append("    ; " + s)
def LBL(s): L.append(s + ":")

NWG = 224
ASTG = 32768
BBASE = 4 * ASTG
BBUF = 16384
LDS_BYTES = BBASE + 2 * BBUF

S_X, S_Q, S_S, S_Z, S_ACT, S_OUT = 16, 20, 24, 28, 32, 36
S_WV = 44; S_M0ROW = 45; S_N0 = 46; S_T0 = 47; S_T1 = 48; S_U = 49
S_OFFB = 50; S_OFFA = 51; S_OFFS = 52; S_M0A = 53; S_MBASE = 54; S_T2 = 55
S_DBG = 56
S_TS = 60

def srd(base, ptr, size):
    I(f"s_mov_b32 s{base}, s{ptr}")
    I(f"s_mov_b32 s{base+1}, s{ptr+1}")
    I(f"s_mov_b32 s{base+2}, {size}")
    I(f"s_mov_b32 s{base+3}, 0x00020000")

def stamp(idx, vt=(120, 121, 122)):
    if not opt["stamps"]: return
    I(f"s_memrealtime s[{S_TS}:{S_TS+1}]")
    I("s_waitcnt lgkmcnt(0)")
    I(f"v_mov_b32 v{vt[0]}, s{S_TS}")
    I(f"v_mov_b32 v{vt[1]}, s{S_TS+1}")
    I(f"v_mov_b32 v{vt[2]}, s62")
    I(f"buffer_store_dwordx2 v[{vt[0]}:{vt[1]}], v{vt[2]}, s[{S_DBG}:{S_DBG+3}], 0 offen offset:{idx*8}")

I(f"s_cmp_ge_u32 s2, {NWG}")
I("s_cbranch_scc1 L_end")
I("s_load_dwordx4 s[4:7], s[0:1], 0")
I("s_load_dwordx4 s[8:11], s[0:1], 16")
I("s_load_dwordx4 s[12:15], s[0:1], 32")
if opt["stamps"]:
    I("s_load_dwordx2 s[40:41], s[0:1], 56")
I("v_lshrrev_b32 v1, 6, v0")
I("v_and_b32 v2, 63, v0")
I(f"s_and_b32 s{S_T0}, s2, 7")
I(f"v_readfirstlane_b32 s{S_WV}, v1")
I(f"s_lshr_b32 s{S_T1}, s2, 3")
I(f"s_and_b32 s{S_M0ROW}, s{S_T0}, 1")
I(f"s_lshl_b32 s{S_M0ROW}, s{S_M0ROW}, 2")
I(f"s_and_b32 s{S_T2}, s{S_T1}, 3")
I(f"s_add_u32 s{S_M0ROW}, s{S_M0ROW}, s{S_T2}")
I(f"s_lshl_b32 s{S_M0ROW}, s{S_M0ROW}, 8")
I(f"s_lshr_b32 s{S_N0}, s{S_T0}, 1")
I(f"s_mul_i32 s{S_N0}, s{S_N0}, 7")
I(f"s_lshr_b32 s{S_T2}, s{S_T1}, 2")
I(f"s_add_u32 s{S_N0}, s{S_N0}, s{S_T2}")
I(f"s_lshl_b32 s{S_N0}, s{S_N0}, 7")
I("v_and_b32 v3, 31, v2")
I("v_lshrrev_b32 v4, 5, v2")
I("s_waitcnt lgkmcnt(0)")
srd(S_X, 4, M * K * 2)
srd(S_Q, 6, K * N * 4)
srd(S_S, 8, 32 * N * 2)
srd(S_Z, 10, 32 * N * 2)
srd(S_ACT, 12, K * 2)
srd(S_OUT, 14, M * N * 2)
if opt["stamps"]:
    srd(S_DBG, 40, 1 << 20)
    I(f"s_lshl_b32 s62, s2, 3")
    I(f"s_add_u32 s62, s62, s{S_WV}")
    I(f"s_lshl_b32 s62, s62, 6")
    stamp(0)
I(f"s_cmp_ge_u32 s{S_WV}, 4")
I("s_cbranch_scc1 L_prod")

ACC = 128
def acc(a, T): return ACC + (a * 4 + T) * 16
FS = [8, 32]
def fA(s, a): return FS[s] + 4 * a
def fB(s, T): return FS[s] + 8 + 4 * T
VAA = 100
VBA = 104
VOUT = 105

if opt["prio"]: I(f"s_setprio {opt['prio']}")
C("A read addresses: (64w+i)*128 + ((2t+h)^((i>>1)&7))*16")
I(f"s_lshl_b32 s{S_T0}, s{S_WV}, 13")
I("v_lshlrev_b32 v5, 7, v3")
I(f"v_add_u32 v5, s{S_T0}, v5")
I("v_bfe_u32 v6, v3, 1, 3")
for t in range(4):
    I(f"v_add_u32 v7, {2*t}, v4")
    I("v_xor_b32 v7, v7, v6")
    I(f"v_lshl_add_u32 v{VAA+t}, v7, 4, v5")
C("B read address: BBASE + h*2048 + j*16")
I("v_lshlrev_b32 v7, 11, v4")
I("v_lshl_add_u32 v7, v3, 4, v7")
I(f"v_add_u32 v{VBA}, {BBASE}, v7")
C("output offset: ((m0+64w+4h)*N + n0 + 4j)*2")
I(f"s_lshl_b32 s{S_T0}, s{S_WV}, 6")
I(f"s_add_u32 s{S_T0}, s{S_T0}, s{S_M0ROW}")
I(f"s_mul_i32 s{S_T0}, s{S_T0}, {N*2}")
I(f"s_lshl_b32 s{S_T1}, s{S_N0}, 1")
I(f"s_add_u32 s{S_T0}, s{S_T0}, s{S_T1}")
I(f"v_mul_u32_u24 v7, {4*N*2}, v4")
I("v_lshl_add_u32 v7, v3, 3, v7")
I(f"v_add_u32 v{VOUT}, s{S_T0}, v7")
for r in range(128):
    I(f"v_mov_b32 v{ACC+r}, 0")

def rdA(s, a, t, par):
    if opt["dsr"]: I(f"ds_read_b128 v[{fA(s,a)}:{fA(s,a)+3}], v{VAA+t} offset:{par*ASTG + a*4096}")
def rdB(s, T, t, par):
    if opt["dsr"]: I(f"ds_read_b128 v[{fB(s,T)}:{fB(s,T)+3}], v{VBA} offset:{par*BBUF + t*4096 + T*512}")
def mfma(s, a, T):
    if opt["mfma"]:
        d = acc(a, T)
        I(f"v_mfma_f32_32x32x16_bf16 v[{d}:{d+15}], v[{fA(s,a)}:{fA(s,a)+3}], v[{fB(s,T)}:{fB(s,T)+3}], v[{d}:{d+15}]")
MORD = [(0,0),(0,1),(0,2),(0,3),(1,3),(1,2),(1,1),(1,0)]
def reads(s, t, par):
    return [lambda: rdA(s,0,t,par), lambda: rdB(s,0,t,par), lambda: rdB(s,1,t,par), lambda: rdB(s,2,t,par), lambda: rdB(s,3,t,par), lambda: rdA(s,1,t,par)]

I("s_barrier")
stamp(1)
for r in reads(0, 0, 0): r()
I(f"s_mov_b32 s{S_U}, 0")
LBL("L_cloop")
for par in range(2):
    for t in range(4):
        s = t & 1
        I("s_waitcnt lgkmcnt(0)")
        if t < 3:
            rd = reads(s ^ 1, t + 1, par)
            for idx, (a, T) in enumerate(MORD):
                mfma(s, a, T)
                if idx < 3:
                    rd[2*idx](); rd[2*idx+1]()
        else:
            rd = reads(s ^ 1, 0, par ^ 1)
            bp = opt["barpos"]
            for idx, (a, T) in enumerate(MORD):
                mfma(s, a, T)
                if idx == bp:
                    if par == 1:
                        C("last step of the pair: flip A stage pair, loop exit test")
                        for tt in range(4):
                            I(f"v_xor_b32 v{VAA+tt}, {2*ASTG}, v{VAA+tt}")
                        I(f"s_add_u32 s{S_U}, s{S_U}, 2")
                        I(f"s_cmp_ge_u32 s{S_U}, 16")
                        I("s_cbranch_scc1 L_ctail")
                    I("s_barrier")
                if bp < idx <= bp + 3:
                    k = idx - bp - 1
                    rd[2*k](); rd[2*k+1]()
I("s_branch L_cloop")
LBL("L_ctail")
for idx, (a, T) in enumerate(MORD):
    if idx > opt["barpos"]: mfma(1, a, T)
stamp(2)
I("s_nop 15")
C("epilogue")
tmp = 8
nt = 0
for a in range(2):
    for r in range(16):
        row = 32*a + 8*(r//4) + (r % 4)
        d = tmp + 2 * (nt % 16); nt += 1
        I(f"v_cvt_pk_bf16_f32 v{d}, v{acc(a,0)+r}, v{acc(a,1)+r}")
        I(f"v_cvt_pk_bf16_f32 v{d+1}, v{acc(a,2)+r}, v{acc(a,3)+r}")
        I(f"s_mov_b32 s{S_T0}, {row*N*2}")
        if opt["store"]:
            I(f"buffer_store_dwordx2 v[{d}:{d+1}], v{VOUT}, s[{S_OUT}:{S_OUT+3}], s{S_T0} offen")
if opt["stamps"]:
    I("s_waitcnt vmcnt(0)")
    stamp(3)
I("s_endpgm")

LBL("L_prod")
VQ = [128, 160]
VSM = [192, 200]
VSC = 208
VT = 224
VO = 232
VOB = 8
VOA = 16
VOS = 24; VOACT = 25; VW = 26
I(f"s_sub_u32 s{S_WV}, s{S_WV}, 4")
C("voffB[e] = (16p+8h+e)*14336 + n0*4 + 16i")
I(f"s_mul_i32 s{S_T0}, s{S_WV}, {16*N*4}")
I(f"s_lshl_b32 s{S_T1}, s{S_N0}, 2")
I(f"s_add_u32 s{S_T0}, s{S_T0}, s{S_T1}")
I(f"v_mul_u32_u24 v5, {8*N*4}, v4")
I("v_lshl_add_u32 v5, v3, 4, v5")
I(f"v_add_u32 v{VOB}, s{S_T0}, v5")
for e in range(1, 8):
    I(f"v_add_u32 v{VOB+e}, {e*N*4}, v{VOB}")
C("voffS = (p>>1)*7168 + (n0+4i)*2 ; voffAct = (16p+8h)*2")
I(f"s_lshr_b32 s{S_T0}, s{S_WV}, 1")
I(f"s_mul_i32 s{S_T0}, s{S_T0}, {N*2}")
I(f"s_lshl_b32 s{S_T1}, s{S_N0}, 1")
I(f"s_add_u32 s{S_T0}, s{S_T0}, s{S_T1}")
I("v_lshlrev_b32 v5, 3, v3")
I(f"v_add_u32 v{VOS}, s{S_T0}, v5")
I(f"s_lshl_b32 s{S_T0}, s{S_WV}, 5")
I("v_lshlrev_b32 v5, 4, v4")
I(f"v_add_u32 v{VOACT}, s{S_T0}, v5")
C("voffA[j] = (m0+64p+8j+(l>>3))*2048 + (((l&7)^((4(j&1)+(l>>4))&7))*16) - (j%4)*1024")
I(f"s_lshl_b32 s{S_T0}, s{S_WV}, 6")
I(f"s_add_u32 s{S_T0}, s{S_T0}, s{S_M0ROW}")
I(f"s_lshl_b32 s{S_T0}, s{S_T0}, 11")
I("v_lshrrev_b32 v5, 3, v2")
I("v_lshlrev_b32 v5, 11, v5")
I(f"v_add_u32 v5, s{S_T0}, v5")
I("v_and_b32 v6, 7, v2")
I("v_lshrrev_b32 v7, 4, v2")
I("v_xor_b32 v6, v6, v7")
I("v_xor_b32 v7, 4, v6")
I("v_lshl_add_u32 v6, v6, 4, v5")
I("v_lshl_add_u32 v7, v7, 4, v5")
for j in range(8):
    I(f"v_add_u32 v{VOA+j}, {8*j*2048 - (j%4)*1024}, v{6 + (j&1)}")
C("LDS write address: BBASE + (2p+h)*2048 + 16i")
I(f"s_lshl_b32 s{S_T0}, s{S_WV}, 12")
I(f"s_add_u32 s{S_T0}, s{S_T0}, {BBASE}")
I("v_lshlrev_b32 v5, 11, v4")
I("v_lshl_add_u32 v5, v3, 4, v5")
I(f"v_add_u32 v{VW}, s{S_T0}, v5")
I(f"s_lshl_b32 s{S_MBASE}, s{S_WV}, 13")

def ld_small(st):
    b = VSM[st]
    I(f"buffer_load_dwordx2 v[{b}:{b+1}], v{VOS}, s[{S_S}:{S_S+3}], s{S_OFFS} offen")
    I(f"buffer_load_dwordx2 v[{b+2}:{b+3}], v{VOS}, s[{S_Z}:{S_Z+3}], s{S_OFFS} offen")
    I(f"buffer_load_dwordx4 v[{b+4}:{b+7}], v{VOACT}, s[{S_ACT}:{S_ACT+3}], s{S_OFFA} offen")
def ld_B(st, e):
    b = VQ[st] + 4 * e
    I(f"buffer_load_dwordx4 v[{b}:{b+3}], v{VOB+e}, s[{S_Q}:{S_Q+3}], s{S_OFFB} offen")
def ld_A(j):
    if j % 4 == 0:
        if j == 0: I(f"s_mov_b32 m0, s{S_M0A}")
        else:      I(f"s_add_u32 m0, s{S_M0A}, 4096")
        I("s_nop 0")
    I(f"buffer_load_dwordx4 v{VOA+j}, s[{S_X}:{S_X+3}], s{S_OFFA} offen offset:{(j%4)*1024} lds")
def set_offsets():
    I(f"s_mul_i32 s{S_OFFB}, s{S_U}, {64*N*4}")
    I(f"s_mul_i32 s{S_OFFS}, s{S_U}, {2*N*2}")
    I(f"s_lshl_b32 s{S_OFFA}, s{S_U}, 7")
    I(f"s_cmp_lt_u32 s{S_U}, 16")
    I(f"s_cselect_b32 s{S_OFFA}, s{S_OFFA}, 0x40000000")
    if not opt["loadA"]: I(f"s_mov_b32 s{S_OFFA}, 0x40000000")
    if not opt["loadB"]: I(f"s_mov_b32 s{S_OFFB}, 0x40000000")
    I(f"s_and_b32 s{S_M0A}, s{S_U}, 3")
    I(f"s_lshl_b32 s{S_M0A}, s{S_M0A}, 15")
    I(f"s_add_u32 s{S_M0A}, s{S_M0A}, s{S_MBASE}")

C("prologue: loads of steps 0 and 1 in the steady-state order")
for u in range(2):
    I(f"s_mov_b32 s{S_U}, {u}")
    set_offsets()
    ld_small(u)
    for rp in range(4):
        ld_B(u, 2*rp); ld_B(u, 2*rp+1); ld_A(2*rp); ld_A(2*rp+1)
I(f"s_mov_b32 s{S_U}, 2")
LBL("L_ploop")
for st in range(2):
    set_offsets()
    b = VSM[st]
    I("s_waitcnt vmcnt(35)")
    if opt["deq"]:
        I(f"v_lshlrev_b32 v{VSC+0}, 16, v{b}")
        I(f"v_and_b32 v{VSC+1}, 0xffff0000, v{b}")
        I(f"v_lshlrev_b32 v{VSC+2}, 16, v{b+1}")
        I(f"v_and_b32 v{VSC+3}, 0xffff0000, v{b+1}")
        I(f"v_lshlrev_b32 v{VSC+4}, 16, v{b+2}")
        I(f"v_and_b32 v{VSC+5}, 0xffff0000, v{b+2}")
        I(f"v_lshlrev_b32 v{VSC+6}, 16, v{b+3}")
        I(f"v_and_b32 v{VSC+7}, 0xffff0000, v{b+3}")
        for d in range(4):
            I(f"v_lshlrev_b32 v{VSC+8+2*d}, 16, v{b+4+d}")
            I(f"v_and_b32 v{VSC+9+2*d}, 0xffff0000, v{b+4+d}")
        for T in range(4):
            I(f"v_mul_f32 v{VSC+4+T}, -v{VSC+4+T}, v{VSC+T}")
    ld_small(st)
    for rp in range(4):
        I("s_waitcnt vmcnt(36)")
        q = VQ[st] + 8 * rp
        if opt["deq"]:
            for x in range(8): I(f"v_cvt_f32_i32 v{VT+x}, v{q+x}")
        ld_B(st, 2*rp); ld_B(st, 2*rp+1)
        if opt["deq"]:
            for x in range(8): I(f"v_fma_f32 v{VT+x}, v{VT+x}, v{VSC+(x%4)}, v{VSC+4+(x%4)}")
        ld_A(2*rp)
        if opt["deq"]:
            for x in range(8): I(f"v_mul_f32 v{VT+x}, v{VT+x}, v{VSC+8+2*rp+(x//4)}")
        ld_A(2*rp+1)
        if opt["deq"]:
            for T in range(4): I(f"v_cvt_pk_bf16_f32 v{VO+4*T+rp}, v{VT+T}, v{VT+4+T}")
    for T in range(4):
        I(f"ds_write_b128 v{VW}, v[{VO+4*T}:{VO+4*T+3}] offset:{st*BBUF + T*512}")
    I(f"s_add_u32 s{S_U}, s{S_U}, 1")
    I("s_waitcnt vmcnt(38) lgkmcnt(0)")
    I("s_barrier")
I(f"s_cmp_lt_u32 s{S_U}, 18")
I("s_cbranch_scc1 L_ploop")
if opt["stamps"]:
    I("s_waitcnt vmcnt(0)")
    stamp(2)
LBL("L_end")
I("s_endpgm")

out = HEADER + f"""; Launch geometry (generated by work/gen.py)
; @launch grid=({NWG},1,1) block=(512,1,1) lds={LDS_BYTES}
.amdgcn_target "amdgcn-amd-amdhsa--gfx950"
.text
.globl {KN}
.p2align 8
.type {KN},@function
{KN}:
""" + "\n".join(L) + f"""
.section .rodata,"a"
.p2align 6
.amdhsa_kernel {KN}
  .amdhsa_next_free_vgpr 256
  .amdhsa_next_free_sgpr 72
  .amdhsa_accum_offset 256
  .amdhsa_group_segment_fixed_size 0
  .amdhsa_kernarg_size 64
  .amdhsa_user_sgpr_count 2
  .amdhsa_user_sgpr_kernarg_segment_ptr 1
  .amdhsa_system_sgpr_workgroup_id_x 1
  .amdhsa_float_denorm_mode_32 3
.end_amdhsa_kernel
"""
open(sys.argv[1], "w").write(out)
```

```python
KN = "standalone__weight_only_int_omniquant__prompt_kernel"
HEADER = open("standalone__weight_only_int_omniquant__prompt.s.ref").read().split("; Override launch")[0]
M, K, N = 2048, 1024, 3584
class Asm:
    def __init__(self): self.L = []
    def I(self, s): self.L.append("    " + s)
    def C(self, s): self.L.append("    ; " + s)
    def LBL(self, s): self.L.append(s + ":")
    def srd(self, base, ptr, size):
        self.I(f"s_mov_b32 s{base}, s{ptr}")
        self.I(f"s_mov_b32 s{base+1}, s{ptr+1}")
        self.I(f"s_mov_b32 s{base+2}, {size}")
        self.I(f"s_mov_b32 s{base+3}, 0x00020000")
    def text(self): return "\n".join(self.L)
def kernel_text(name, body):
    return f""".globl {name}
.p2align 8
.type {name},@function
{name}:
{body}
"""
def kd(name, vgpr, sgpr):
    acc = (vgpr + 3) // 4 * 4
    return f""".p2align 6
.amdhsa_kernel {name}
  .amdhsa_next_free_vgpr {vgpr}
  .amdhsa_next_free_sgpr {sgpr}
  .amdhsa_accum_offset {acc}
  .amdhsa_group_segment_fixed_size 0
  .amdhsa_kernarg_size 64
  .amdhsa_user_sgpr_count 2
  .amdhsa_user_sgpr_kernarg_segment_ptr 1
  .amdhsa_system_sgpr_workgroup_id_x 1
  .amdhsa_float_denorm_mode_32 3
.end_amdhsa_kernel
"""
```

```python
import sys
from asmlib import *
opt = dict(mfma=1, stamps=0, prio=1, barpos=8, hfirst=0, ostf=3, grp=0, cpf=1, hp0=2, hdel=1, npoll=0, diag=0, epi=1, fstr=4)
for a in sys.argv[2:]:
    k, v = a.split("="); opt[k] = int(v)
g = Asm(); I = g.I; C = g.C
NWG = 256
STG = 49152; NSTG = 3; BOFF = 32768
CNT = STG * NSTG
LDS_BYTES = CNT + 64
WB_OFF = (1 << 20) if opt["stamps"] else 0
WB_BYTES = 28 * 16 * 16384
FSTR = opt["fstr"]
FB_OFF = WB_BYTES
FL_OFF = FB_OFF + 28 * 128
FPAN = max(128, 16 * FSTR)
WS_BYTES = FL_OFF + 28 * FPAN
FKEY = 0x5ac3a53c
OSTF = {0: "", 1: " sc1", 2: " sc0 sc1", 3: " nt", 4: " sc1 nt"}[opt["ostf"]]
S_X, S_Q, S_S, S_Z, S_ACT, S_OUT, S_WB, S_DBG = 16, 20, 24, 28, 32, 36, 68, 72
S_WV = 44; S_MI = 45; S_NI = 46; S_T0 = 47; S_T1 = 48; S_U = 49; S_T2 = 55
S_OB = 50; S_OA = 51; S_STG = 52; S_MA = 53; S_XCD = 54; S_SLOT = 63; S_P = 66; S_CS = 67; S_PB = 76; S_NP = 77; S_FL = 78; S_PEND = 79; S_SP = 80
S_F = 84
VQ = 56; VR = 88; VSC = 128; VO = 32; VOA = 16
VFA = 113; VF0 = 114; VCN = 115; VTMP = 116

def kreg(idx): return 100 if idx == 0 else 84 + 2*idx
def stamp_setup():
    if not opt["stamps"]: return
    g.srd(56, 42, 1 << 20)
    I("s_lshl_b32 s62, s2, 3"); I(f"s_add_u32 s62, s62, s{S_WV}"); I("s_lshl_b32 s62, s62, 6")
def keep(idx):
    if not opt["stamps"]: return
    I(f"s_memrealtime s[{kreg(idx)}:{kreg(idx)+1}]")
def flush_keeps(idxs, vt=122):
    if not opt["stamps"]: return
    I("s_waitcnt lgkmcnt(0)")
    for idx in idxs:
        I(f"v_mov_b32 v{vt}, s{kreg(idx)}"); I(f"v_mov_b32 v{vt+1}, 0"); I(f"v_mov_b32 v{vt+2}, s62")
        I(f"buffer_store_dwordx2 v[{vt}:{vt+1}], v{vt+2}, s[56:59], 0 offen offset:{idx*8}")
def next_stage():
    I(f"s_add_u32 s{S_STG}, s{S_STG}, {STG}"); I(f"s_cmp_ge_u32 s{S_STG}, {STG*NSTG}"); I(f"s_cselect_b32 s{S_STG}, 0, s{S_STG}")
def ld_A():
    for j in range(8):
        if j % 4 == 0:
            if j == 0: I(f"s_add_u32 m0, s{S_STG}, s{S_MA}")
            else:      I("s_add_u32 m0, m0, 4096")
            I("s_nop 0")
        I(f"buffer_load_dwordx4 v{VOA+j}, s[{S_X}:{S_X+3}], s{S_OA} offen offset:{(j%4)*1024} lds")
def step_of_pos():
    if opt["grp"]:
        I(f"s_add_u32 s{S_CS}, s{S_U}, s{S_MI}"); I(f"s_add_u32 s{S_CS}, s{S_CS}, 3"); I(f"s_and_b32 s{S_CS}, s{S_CS}, 3")
        I(f"s_and_b32 s{S_T0}, s{S_MI}, 4"); I(f"s_or_b32 s{S_CS}, s{S_CS}, s{S_T0}")
        I(f"s_cmp_ge_u32 s{S_U}, 5"); I(f"s_cselect_b32 s{S_T0}, 4, 0"); I(f"s_xor_b32 s{S_CS}, s{S_CS}, s{S_T0}")
    else:
        I(f"s_add_u32 s{S_CS}, s{S_U}, s{S_MI}"); I(f"s_add_u32 s{S_CS}, s{S_CS}, 7"); I(f"s_and_b32 s{S_CS}, s{S_CS}, 7")
    I(f"s_add_u32 s{S_T0}, s{S_U}, s{S_MI}"); I(f"s_and_b32 s{S_T0}, s{S_T0}, 7"); I(f"s_or_b32 s{S_T0}, s{S_T0}, 8")
    I(f"s_cmp_ge_u32 s{S_U}, 9")
    I(f"s_cselect_b32 s{S_CS}, s{S_T0}, s{S_CS}")

keep(0)
I(f"s_cmp_ge_u32 s2, {NWG}")
I("s_cbranch_scc1 L_end")
I("s_load_dwordx4 s[4:7], s[0:1], 0")
I("s_load_dwordx4 s[8:11], s[0:1], 16")
I("s_load_dwordx4 s[12:15], s[0:1], 32")
I("s_load_dwordx4 s[40:43], s[0:1], 48")
I("v_lshrrev_b32 v1, 6, v0")
I("v_and_b32 v2, 63, v0")
I(f"s_and_b32 s{S_XCD}, s2, 7")
I(f"v_readfirstlane_b32 s{S_WV}, v1")
I(f"s_lshr_b32 s{S_SLOT}, s2, 3")
I("v_and_b32 v3, 31, v2"); I("v_lshrrev_b32 v4, 5, v2")
I(f"s_and_b32 s{S_P}, s{S_WV}, 3")
if opt["hfirst"]:
    I(f"s_add_u32 s{S_SLOT}, s{S_SLOT}, 28"); I(f"s_and_b32 s{S_SLOT}, s{S_SLOT}, 31")
I(f"s_cmp_ge_u32 s{S_SLOT}, 28")
I("s_cbranch_scc1 L_help")
I(f"s_and_b32 s{S_MI}, s{S_XCD}, 1"); I(f"s_lshl_b32 s{S_MI}, s{S_MI}, 2")
I(f"s_and_b32 s{S_T2}, s{S_SLOT}, 3"); I(f"s_add_u32 s{S_MI}, s{S_MI}, s{S_T2}")
I(f"s_lshr_b32 s{S_NI}, s{S_XCD}, 1"); I(f"s_mul_i32 s{S_NI}, s{S_NI}, 7")
I(f"s_lshr_b32 s{S_T2}, s{S_SLOT}, 2"); I(f"s_add_u32 s{S_NI}, s{S_NI}, s{S_T2}")
I(f"s_cmp_ge_u32 s{S_WV}, 4")
I(f"s_cselect_b32 s{S_CS}, 0, 8"); I(f"s_cselect_b32 s{S_STG}, 0, {STG}"); I(f"s_add_u32 s{S_CS}, s{S_CS}, s{S_MI}")
C("v5 = q offset (64*step+16p+8h)*14336 + ni*512 + 16i ; v6 = scale offset ; v7 = act offset")
I(f"s_lshl_b32 s{S_T2}, s{S_CS}, 2"); I(f"s_add_u32 s{S_T2}, s{S_T2}, s{S_P}")
I(f"s_mul_i32 s{S_T0}, s{S_T2}, {16*N*4}"); I(f"s_lshl_b32 s{S_T1}, s{S_NI}, 9"); I(f"s_add_u32 s{S_T0}, s{S_T0}, s{S_T1}")
I(f"v_mul_u32_u24 v5, {8*N*4}, v4"); I("v_lshl_add_u32 v5, v3, 4, v5"); I(f"v_add_u32 v5, s{S_T0}, v5")
I(f"s_lshr_b32 s{S_T0}, s{S_T2}, 1"); I(f"s_mul_i32 s{S_T0}, s{S_T0}, {N*2}"); I(f"s_lshl_b32 s{S_T1}, s{S_NI}, 8"); I(f"s_add_u32 s{S_T0}, s{S_T0}, s{S_T1}")
I("v_lshlrev_b32 v6, 3, v3"); I(f"v_add_u32 v6, s{S_T0}, v6")
I(f"s_lshl_b32 s{S_T0}, s{S_T2}, 5"); I("v_lshlrev_b32 v7, 4, v4"); I(f"v_add_u32 v7, s{S_T0}, v7")
I("v_mov_b32 v14, 0"); I(f"v_mov_b32 v{VCN}, {CNT}")
I(f"ds_write_b32 v{VCN}, v14")
I("s_waitcnt lgkmcnt(0)")
g.srd(S_S, 8, 32*N*2); g.srd(S_Z, 10, 32*N*2); g.srd(S_ACT, 12, K*2)
I(f"buffer_load_dwordx2 v[{VR}:{VR+1}], v6, s[{S_S}:{S_S+3}], 0 offen nt")
I(f"buffer_load_dwordx2 v[{VR+2}:{VR+3}], v6, s[{S_Z}:{S_Z+3}], 0 offen nt")
I(f"buffer_load_dwordx4 v[{VR+4}:{VR+7}], v7, s[{S_ACT}:{S_ACT+3}], 0 offen nt")
g.srd(S_Q, 6, K*N*4)
C("E waves queue their weight loads first")
I(f"s_cmp_ge_u32 s{S_WV}, 4"); I("s_cbranch_scc1 L_o1")
I("s_barrier")
g.LBL("L_o1")
for e in range(8):
    I(f"s_mov_b32 s{S_T0}, {e*N*4}")
    I(f"buffer_load_dwordx4 v[{VQ+4*e}:{VQ+4*e+3}], v5, s[{S_Q}:{S_Q+3}], s{S_T0} offen nt")
I(f"s_cmp_lt_u32 s{S_WV}, 4"); I("s_cbranch_scc1 L_o2")
I("s_barrier")
g.LBL("L_o2")
I(f"s_add_u32 s{S_WB}, s42, {WB_OFF}"); I(f"s_addc_u32 s{S_WB+1}, s43, 0"); I(f"s_mov_b32 s{S_WB+2}, {WS_BYTES}"); I(f"s_mov_b32 s{S_WB+3}, 0x00020000")
C("hand-off words: chunk published <=> flag == base ^ KEY; base as found at entry (scalar path)")
I(f"s_lshl_b32 s{S_T0}, s{S_NI}, 7"); I(f"s_add_u32 s{S_T0}, s{S_T0}, {FB_OFF}")
I(f"s_add_u32 s82, s{S_WB}, s{S_T0}"); I(f"s_addc_u32 s83, s{S_WB+1}, 0")
I(f"s_load_dwordx16 s[{S_F}:{S_F+15}], s[82:83], 0")
I("v_and_b32 v29, 15, v2"); I(f"v_mul_u32_u24 v{VFA}, {FSTR}, v29")
I("v_lshlrev_b32 v29, 2, v29"); I(f"v_add_u32 v29, s{S_T0}, v29")
I(f"s_mul_i32 s{S_T0}, s{S_NI}, {FPAN}"); I(f"s_add_u32 s{S_T0}, s{S_T0}, {FL_OFF}"); I(f"v_add_u32 v{VFA}, s{S_T0}, v{VFA}")
I(f"s_lshl_b32 s{S_T0}, s{S_NI}, 4"); I(f"s_add_u32 s{S_T0}, s{S_T0}, s{S_CS}"); I(f"s_lshl_b32 s{S_SP}, s{S_T0}, 14")
I("v_lshlrev_b32 v24, 4, v2"); I(f"s_lshl_b32 s{S_T0}, s{S_NI}, 18"); I(f"v_add_u32 v24, s{S_T0}, v24")
g.srd(S_X, 4, M*K*2)
stamp_setup()
C("v8 = image offset in chunk: (2p+h)*2048 + (i&1)*1024 + (((i>>1)^(4*(i&1)))*16)  (+ c*256)")
I(f"s_lshl_b32 s{S_T0}, s{S_P}, 12")
I("v_lshlrev_b32 v8, 11, v4"); I(f"v_add_u32 v8, s{S_T0}, v8")
I("v_and_b32 v9, 1, v3"); I("v_lshl_add_u32 v8, v9, 10, v8"); I("v_lshlrev_b32 v9, 2, v9")
I("v_lshrrev_b32 v10, 1, v3"); I("v_xor_b32 v10, v10, v9"); I("v_lshl_add_u32 v8, v10, 4, v8")
I(f"v_add_u32 v9, s{S_STG}, v8")
C("A DMA offsets: (m0+64p+8j+(l>>3))*2048 + (((l&7)^((4(j&1)+(l>>4))&7))*16) - (j%4)*1024")
I(f"s_lshl_b32 s{S_T0}, s{S_P}, 6"); I(f"s_lshl_b32 s{S_T1}, s{S_MI}, 8"); I(f"s_add_u32 s{S_T0}, s{S_T0}, s{S_T1}"); I(f"s_lshl_b32 s{S_T0}, s{S_T0}, 11")
I("v_lshrrev_b32 v11, 3, v2"); I("v_lshlrev_b32 v11, 11, v11"); I(f"v_add_u32 v11, s{S_T0}, v11")
I("v_and_b32 v12, 7, v2"); I("v_lshrrev_b32 v13, 4, v2"); I("v_xor_b32 v12, v12, v13"); I("v_xor_b32 v13, 4, v12")
I("v_lshl_add_u32 v12, v12, 4, v11"); I("v_lshl_add_u32 v13, v13, 4, v11")
for j in range(8): I(f"v_add_u32 v{VOA+j}, {8*j*2048 - (j%4)*1024}, v{12 + (j&1)}")
I(f"s_lshl_b32 s{S_MA}, s{S_P}, 13")
I(f"s_lshl_b32 s{S_OA}, s{S_CS}, 7")
C("MFMA-wave addresses (cheap, computed by every wave while the loads fly)")
VA0 = 104; VA = 108; VOUT = 112
I("v_lshrrev_b32 v3, 4, v2"); I("v_and_b32 v4, 15, v2")
I("v_lshlrev_b32 v5, 7, v4"); I(f"v_add_u32 v5, s{S_MA}, v5"); I("v_bfe_u32 v6, v4, 1, 3")
for t in range(2):
    I(f"v_add_u32 v10, {4*t}, v3"); I("v_xor_b32 v10, v10, v6"); I(f"v_lshl_add_u32 v{VA0+t}, v10, 4, v5")
I("v_lshlrev_b32 v10, 11, v3"); I(f"v_add_u32 v10, {BOFF}, v10")
I(f"v_lshl_add_u32 v{VA0+2}, v4, 4, v10")
I("v_xor_b32 v11, 4, v4"); I(f"v_lshl_add_u32 v{VA0+3}, v11, 4, v10")
for t in range(4): I(f"v_mov_b32 v{VA+t}, v{VA0+t}")
I(f"s_lshl_b32 s{S_T0}, s{S_P}, 6"); I(f"s_lshl_b32 s{S_T1}, s{S_MI}, 8"); I(f"s_add_u32 s{S_T0}, s{S_T0}, s{S_T1}")
I(f"s_mul_i32 s{S_T0}, s{S_T0}, {N*2}"); I(f"s_lshl_b32 s{S_T1}, s{S_NI}, 8"); I(f"s_add_u32 s{S_T0}, s{S_T0}, s{S_T1}")
I(f"v_mul_u32_u24 v10, {4*N*2}, v3"); I("v_lshl_add_u32 v10, v4, 4, v10"); I(f"v_add_u32 v{VOUT}, s{S_T0}, v10")
g.srd(S_OUT, 14, M*N*2)
I("s_waitcnt lgkmcnt(0)")
I(f"v_mov_b32 v{VF0}, 0")
for l in range(16): I(f"v_writelane_b32 v{VF0}, s{S_F+l}, {l}")
I(f"v_xor_b32 v{VF0}, {FKEY:#x}, v{VF0}")
C("dequantise: w = bf16(((float)q*s - z*s) * a[k]), row pair by row pair as the loads land")
I("s_waitcnt vmcnt(8)")
for d in range(4):
    I(f"v_lshlrev_b32 v{VSC+2*d}, 16, v{VR+d}"); I(f"v_and_b32 v{VSC+2*d+1}, 0xffff0000, v{VR+d}")
for d in range(4):
    I(f"v_lshlrev_b32 v{VSC+8+2*d}, 16, v{VR+4+d}"); I(f"v_and_b32 v{VSC+9+2*d}, 0xffff0000, v{VR+4+d}")
for T in range(4): I(f"v_mul_f32 v{VSC+4+T}, -v{VSC+4+T}, v{VSC+T}")
for e in range(8):
    I(f"s_waitcnt vmcnt({7-e})")
    if e == 7 and opt["diag"]: keep(7)
    q = VQ + 4*e
    for c in range(4): I(f"v_cvt_f32_i32 v{q+c}, v{q+c}")
    for c in range(4): I(f"v_fma_f32 v{q+c}, v{q+c}, v{VSC+c}, v{VSC+4+c}")
    for c in range(4): I(f"v_mul_f32 v{q+c}, v{q+c}, v{VSC+8+e}")
    if e & 1:
        for c in range(4): I(f"v_cvt_pk_bf16_f32 v{VO+4*c+e//2}, v{q-4+c}, v{q+c}")
I(f"s_cmp_lt_u32 s{S_WV}, 4")
I("s_cbranch_scc1 L_cons")

for c in range(4): I(f"buffer_store_dwordx4 v[{VO+4*c}:{VO+4*c+3}], v8, s[{S_WB}:{S_WB+3}], s{S_SP} offen offset:{c*256} sc1")
keep(1)
ld_A()
for c in range(4): I(f"ds_write_b128 v9, v[{VO+4*c}:{VO+4*c+3}] offset:{BOFF + c*256}")
I(f"s_mov_b32 s{S_STG}, {STG}")
I("s_waitcnt vmcnt(0)")
keep(2)
I(f"v_mov_b32 v{VTMP}, 1")
I("s_mov_b64 exec, 1")
I(f"ds_add_rtn_u32 v{VTMP+1}, v{VCN}, v{VTMP}")
I("s_waitcnt lgkmcnt(0)")
I(f"v_readfirstlane_b32 s{S_T0}, v{VTMP+1}")
I(f"s_cmp_lg_u32 s{S_T0}, 3")
I("s_cbranch_scc1 L_nf0")
I(f"s_lshl_b32 s{S_T1}, 1, s{S_MI}")
I(f"s_mov_b32 exec_lo, s{S_T1}")
I(f"buffer_store_dword v{VF0}, v{VFA}, s[{S_WB}:{S_WB+3}], 0 offen sc1")
g.LBL("L_nf0")
I("s_mov_b64 exec, -1")
I("s_barrier")
I(f"s_mov_b32 s{S_U}, 2")
I(f"s_cmp_eq_u32 s{S_WV}, 4")
I("s_cbranch_scc1 L_bload")
C("waves 5-7: A shares; waves 5,6 also copy the L image (stage 1) out to ws, 8 KB each")
I(f"s_sub_u32 s{S_T0}, s{S_WV}, 5"); I(f"s_lshl_b32 s{S_T0}, s{S_T0}, 13")
I("v_lshlrev_b32 v25, 4, v2"); I(f"v_add_u32 v25, s{S_T0}, v25")
I(f"v_add_u32 v26, {STG + BOFF}, v25")
I(f"s_add_u32 s{S_SP}, s{S_SP}, {8*16384}"); I(f"s_add_u32 s81, s{S_SP}, 4096")
g.LBL("L_aloop")
I(f"s_cmp_lg_u32 s{S_U}, 5"); I("s_cbranch_scc1 L_a1")
I("s_waitcnt vmcnt(0)")
g.LBL("L_a1")
I(f"s_cmp_lg_u32 s{S_U}, 6"); I("s_cbranch_scc1 L_a2")
I(f"s_cmp_lg_u32 s{S_WV}, 5"); I("s_cbranch_scc1 L_a2")
I(f"s_lshl_b32 s{S_T1}, 256, s{S_MI}")
I(f"s_mov_b32 exec_lo, s{S_T1}"); I("s_mov_b32 exec_hi, 0")
I(f"buffer_store_dword v{VF0}, v{VFA}, s[{S_WB}:{S_WB+3}], 0 offen sc1")
I("s_mov_b64 exec, -1")
g.LBL("L_a2")
step_of_pos(); next_stage(); I(f"s_lshl_b32 s{S_OA}, s{S_CS}, 7"); ld_A()
I("s_waitcnt vmcnt(8)")
I(f"s_cmp_lg_u32 s{S_U}, 3"); I("s_cbranch_scc1 L_a3")
I(f"s_cmp_eq_u32 s{S_WV}, 7"); I("s_cbranch_scc1 L_a3")
for j in range(8): I(f"ds_read_b128 v[{128+4*j}:{131+4*j}], v26 offset:{j*1024}")
I("s_waitcnt lgkmcnt(0)")
I("s_barrier")
for j in range(8):
    I(f"buffer_store_dwordx4 v[{128+4*j}:{131+4*j}], v25, s[{S_WB}:{S_WB+3}], s{S_SP if j < 4 else 81} offen offset:{(j%4)*1024} sc1")
I("s_branch L_a4")
g.LBL("L_a3")
I("s_barrier")
g.LBL("L_a4")
I(f"s_add_u32 s{S_U}, s{S_U}, 1")
I(f"s_cmp_lt_u32 s{S_U}, 16")
I("s_cbranch_scc1 L_aloop")
I("s_waitcnt vmcnt(0)")
I("s_barrier")
flush_keeps([0, 1, 2])
I("s_endpgm")

g.LBL("L_bload")
C("wave 4: S_U next position to issue, S_PB last barrier passed, S_FL mask of published steps")
I(f"s_mov_b32 s{S_PB}, 0"); I(f"s_mov_b32 s{S_FL}, 0"); I(f"s_mov_b32 s{S_NP}, 0")
g.LBL("L_sm")
I(f"s_mov_b32 s{S_PEND}, 0")
I(f"s_cmp_ge_u32 s{S_U}, 16")
I("s_cbranch_scc1 L_trybar")
step_of_pos()
I(f"s_bitcmp1_b32 s{S_FL}, s{S_CS}")
I("s_cbranch_scc0 L_dopoll")
I(f"s_add_u32 s{S_T0}, s{S_PB}, 2")
I(f"s_cmp_gt_u32 s{S_U}, s{S_T0}")
I("s_cbranch_scc1 L_trybar")
if opt["stamps"]:
    I(f"s_cmp_lg_u32 s{S_U}, 2"); I("s_cbranch_scc1 L_ns1"); keep(5); g.LBL("L_ns1")
    I(f"s_cmp_lg_u32 s{S_U}, 8"); I("s_cbranch_scc1 L_ns2"); keep(6); g.LBL("L_ns2")
next_stage()
I(f"s_lshl_b32 s{S_OB}, s{S_CS}, 14"); I(f"s_lshl_b32 s{S_OA}, s{S_CS}, 7")
for jj in range(4):
    I(f"s_add_u32 m0, s{S_STG}, {BOFF + jj*4096}")
    if jj: I(f"s_add_u32 s{S_OB}, s{S_OB}, 4096")
    else: I("s_nop 0")
    for j in range(4): I(f"buffer_load_dwordx4 v24, s[{S_WB}:{S_WB+3}], s{S_OB} offen offset:{j*1024} lds")
ld_A()
I(f"s_add_u32 s{S_U}, s{S_U}, 1")
I("s_branch L_sm")
g.LBL("L_dopoll")
I("s_mov_b64 exec, 0xffff")
I(f"buffer_load_dword v28, v{VFA}, s[{S_WB}:{S_WB+3}], 0 offen sc1")
I(f"s_add_u32 s{S_NP}, s{S_NP}, 1")
I(f"s_mov_b32 s{S_PEND}, 1")
if opt["npoll"]:
    I(f"s_cmp_le_u32 s{S_NP}, {opt['npoll']}")
    I("s_cbranch_scc1 L_nobar")
g.LBL("L_trybar")
I(f"s_sub_u32 s{S_T0}, s{S_U}, s{S_PB}")
I(f"s_cmp_le_u32 s{S_T0}, 1")
I("s_cbranch_scc1 L_nobar")
I(f"s_lshl_b32 s{S_T0}, s{S_T0}, 1"); I(f"s_add_u32 s{S_T0}, s{S_T0}, s{S_PEND}")
I(f"s_cmp_eq_u32 s{S_T0}, 6"); I("s_cbranch_scc1 L_w24")
I(f"s_cmp_eq_u32 s{S_T0}, 7"); I("s_cbranch_scc1 L_w25")
I(f"s_cmp_eq_u32 s{S_T0}, 5"); I("s_cbranch_scc1 L_w1")
I("s_waitcnt vmcnt(0)")
g.LBL("L_w1")
I("s_waitcnt vmcnt(1)")
g.LBL("L_w24")
I("s_waitcnt vmcnt(24)")
g.LBL("L_w25")
I("s_waitcnt vmcnt(25)")
I("s_barrier")
I(f"s_add_u32 s{S_PB}, s{S_PB}, 1")
I(f"s_cmp_ge_u32 s{S_PB}, 15")
I("s_cbranch_scc1 L_bdone")
g.LBL("L_nobar")
I(f"s_cmp_eq_u32 s{S_PEND}, 0")
I("s_cbranch_scc1 L_sm")
I(f"s_cmp_lt_u32 s{S_NP}, 0x40000")
I("s_cbranch_scc1 L_waitpoll")
I(f"s_mov_b32 s{S_FL}, 0xffff")
g.LBL("L_waitpoll")
I("s_waitcnt vmcnt(0)")
I(f"v_cmp_eq_u32 vcc, v28, v{VF0}")
I(f"s_or_b32 s{S_FL}, s{S_FL}, vcc_lo")
I("s_mov_b64 exec, -1")
I("s_branch L_sm")
g.LBL("L_bdone")
C("every sharer has published, hence read the base words: re-arm this WG's two words (base := flag value)")
I(f"s_lshl_b32 s{S_T1}, 0x101, s{S_MI}")
I(f"s_mov_b32 exec_lo, s{S_T1}"); I("s_mov_b32 exec_hi, 0")
I(f"buffer_store_dword v{VF0}, v29, s[{S_WB}:{S_WB+3}], 0 offen sc1")
I("s_mov_b64 exec, -1")
if opt["stamps"]: I("s_waitcnt lgkmcnt(0)"); I(f"s_mov_b32 s98, s{S_NP}")
flush_keeps([0, 1, 2, 5, 6, 7])
I("s_endpgm")

g.LBL("L_cons")
for c in range(4): I(f"ds_write_b128 v9, v[{VO+4*c}:{VO+4*c+3}] offset:{BOFF + c*256}")
keep(0)
ld_A()
ACC = 128
def acc(a, T): return ACC + (a * 8 + T) * 4
FS = [8, 56]
def fA(s, a): return FS[s] + 4 * a
def fB(s, T): return FS[s] + 16 + 4 * T
def rdA(s, a, t): I(f"ds_read_b128 v[{fA(s,a)}:{fA(s,a)+3}], v{VA+t} offset:{a*2048}")
def rdB(s, T, t): I(f"ds_read_b128 v[{fB(s,T)}:{fB(s,T)+3}], v{VA+2+(T>>2)} offset:{t*8192 + T*256}")
def mfma(s, a, T, first=False):
    if opt["mfma"]:
        d = acc(a, T)
        I(f"v_mfma_f32_16x16x32_bf16 v[{d}:{d+3}], v[{fA(s,a)}:{fA(s,a)+3}], v[{fB(s,T)}:{fB(s,T)+3}], " + ("0" if first else f"v[{d}:{d+3}]"))
MORD = []
for a in range(4):
    MORD += [(a, T) for T in (range(8) if a % 2 == 0 else range(7, -1, -1))]
def reads(s, t):
    return [lambda: rdA(s,0,t)] + [(lambda T: (lambda: rdB(s,T,t)))(T) for T in range(8)] + [(lambda a: (lambda: rdA(s,a,t)))(a) for a in range(1,4)]
BP = opt["barpos"]
def half0(first):
    I("s_waitcnt lgkmcnt(0)")
    rd = reads(1, 1)
    for idx, (a, T) in enumerate(MORD):
        mfma(0, a, T, first)
        if idx < len(rd): rd[idx]()
        if idx == 16: next_stage()
        if idx == 18: I(f"s_add_u32 s{S_U}, s{S_U}, 1")
        if idx == 20:
            for tt in range(4): I(f"v_add_u32 v{VA+tt}, s{S_STG}, v{VA0+tt}")
if opt["prio"]: I(f"s_setprio {opt['prio']}")
I(f"s_mov_b32 s{S_U}, 0"); I(f"s_mov_b32 s{S_STG}, 0")
I("s_waitcnt lgkmcnt(0)")
I("s_barrier")
keep(1)
if opt["stamps"]: I("s_memtime s[64:65]")
for r in reads(0, 0): r()
half0(True)
I("s_waitcnt vmcnt(0)")
I("s_branch L_chalf1")
g.LBL("L_cloop")
half0(False)
g.LBL("L_chalf1")
I("s_waitcnt lgkmcnt(0)")
rd = reads(0, 0)
for idx, (a, T) in enumerate(MORD):
    mfma(1, a, T)
    if idx == BP:
        I(f"s_cmp_ge_u32 s{S_U}, 16")
        I("s_cbranch_scc1 L_ctail")
        I("s_barrier")
        if opt["stamps"]:
            I(f"s_cmp_lg_u32 s{S_U}, 1"); I("s_cbranch_scc1 L_cs1"); keep(4); g.LBL("L_cs1")
            I(f"s_cmp_lg_u32 s{S_U}, 2"); I("s_cbranch_scc1 L_cs2"); keep(5); g.LBL("L_cs2")
            if not opt["diag"]: I(f"s_cmp_lg_u32 s{S_U}, 9"); I("s_cbranch_scc1 L_cs3"); keep(7); g.LBL("L_cs3")
    if idx > BP and idx - BP - 1 < len(rd): rd[idx-BP-1]()
I("s_branch L_cloop")
g.LBL("L_ctail")
def epi_ops(a):
    ops = []
    for r in range(4):
        d = 8 + 4 * ((a*4 + r) % 12)
        for p in range(4): ops.append(f"v_cvt_pk_bf16_f32 v{d+p}, v{acc(a,2*p)+r}, v{acc(a,2*p+1)+r}")
        ops.append(f"s_mov_b32 s{S_T0}, {(16*a+r)*N*2}")
        ops.append(f"buffer_store_dwordx4 v[{d}:{d+3}], v{VOUT}, s[{S_OUT}:{S_OUT+3}], s{S_T0} offen{OSTF}")
    return ops
pend = []; done_a = set()
for idx, (a, T) in enumerate(MORD):
    if idx <= BP: continue
    mfma(1, a, T)
    if opt["epi"]:
        for ap in range(3):
            if ap not in done_a and idx >= 8*ap + 7 + 8:
                pend += epi_ops(ap); done_a.add(ap)
        for o in pend[:3]: I(o)
        pend = pend[3:]
keep(2)
if opt["stamps"]: I("s_memtime s[60:61]")
for o in pend: I(o)
rest = [a for a in range(4) if a not in done_a]
for a in rest[:-1]:
    for o in epi_ops(a): I(o)
I("s_nop 7")
for o in epi_ops(rest[-1]): I(o)
if not opt["epi"]: pass
if opt["stamps"]:
    I("s_waitcnt vmcnt(0)"); keep(3); I("s_waitcnt lgkmcnt(0)")
    I("s_sub_u32 s96, s60, s64")
    flush_keeps([0, 1, 2, 3, 4, 5, 6, 7])
I("s_endpgm")

g.LBL("L_help")
if opt["cpf"]:
    C("pull the kernel's code into this die's L2 (range-checked)")
    I("s_getpc_b64 s[56:57]")
    g.LBL("L_pc")
    I(f"s_sub_u32 s56, s56, L_pc-{KN}"); I("s_subb_u32 s57, s57, 0")
    I(f"s_mov_b32 s58, L_codeend-{KN}"); I("s_mov_b32 s59, 0x00020000")
    I("v_lshlrev_b32 v10, 7, v0")
    I("buffer_load_dword v9, v10, s[56:59], 0 offen")
I(f"s_sub_u32 s{S_SLOT}, s{S_SLOT}, 28")
C("pass 0: tile mi=4*(xcd&1)+hs, rows 64*(wave&3)+lane, line mi (waves 0-3) / 8+mi (waves 4-7)")
I(f"s_and_b32 s{S_MI}, s{S_XCD}, 1"); I(f"s_lshl_b32 s{S_MI}, s{S_MI}, 2"); I(f"s_add_u32 s{S_MI}, s{S_MI}, s{S_SLOT}")
I(f"s_lshl_b32 s{S_T0}, s{S_MI}, 8"); I(f"s_lshl_b32 s{S_T1}, s{S_P}, 6"); I(f"s_add_u32 s{S_T0}, s{S_T0}, s{S_T1}")
I(f"s_lshl_b32 s{S_T0}, s{S_T0}, 11")
I("v_lshlrev_b32 v5, 11, v2"); I(f"v_add_u32 v5, s{S_T0}, v5")
I(f"s_lshr_b32 s{S_T0}, s{S_WV}, 2"); I(f"s_lshl_b32 s{S_T0}, s{S_T0}, 3"); I(f"s_add_u32 s{S_T0}, s{S_T0}, s{S_MI}"); I(f"s_lshl_b32 s{S_OA}, s{S_T0}, 7")
C("passes 1,2: rows 1024*(xcd&1) + 256*(xcd>>1) + 64*hs + 8*wave + (l>>3), line (l&7), then +8")
I(f"s_and_b32 s{S_T0}, s{S_XCD}, 1"); I(f"s_lshl_b32 s{S_T0}, s{S_T0}, 10")
I(f"s_lshr_b32 s{S_T1}, s{S_XCD}, 1"); I(f"s_lshl_b32 s{S_T1}, s{S_T1}, 8"); I(f"s_add_u32 s{S_T0}, s{S_T0}, s{S_T1}")
I(f"s_lshl_b32 s{S_T1}, s{S_SLOT}, 6"); I(f"s_add_u32 s{S_T0}, s{S_T0}, s{S_T1}")
I(f"s_lshl_b32 s{S_T1}, s{S_WV}, 3"); I(f"s_add_u32 s{S_T0}, s{S_T0}, s{S_T1}")
I(f"s_lshl_b32 s{S_T0}, s{S_T0}, 11")
I("v_lshrrev_b32 v11, 3, v2"); I("v_lshlrev_b32 v11, 11, v11"); I("v_and_b32 v12, 7, v2"); I("v_lshl_add_u32 v11, v12, 7, v11")
I(f"v_add_u32 v11, s{S_T0}, v11")
I("s_waitcnt lgkmcnt(0)")
g.srd(S_X, 4, M*K*2)
stamp_setup()
if opt["hp0"]:
    I(f"buffer_load_dword v15, v5, s[{S_X}:{S_X+3}], s{S_OA} offen")
    if opt["hdel"]: I("s_waitcnt vmcnt(0)")
    keep(3)
    I("s_barrier")
else: keep(3)
I(f"buffer_load_dword v14, v11, s[{S_X}:{S_X+3}], 0 offen")
if opt["hdel"]: I("s_waitcnt vmcnt(0)"); keep(1)
I("s_barrier")
I(f"buffer_load_dword v13, v11, s[{S_X}:{S_X+3}], 0 offen offset:1024")
if opt["stamps"]:
    if not opt["hdel"]: I("s_waitcnt vmcnt(1)"); keep(1)
    I("s_waitcnt vmcnt(0)"); keep(2); flush_keeps([0, 1, 2, 3])
g.LBL("L_end")
I("s_endpgm")
g.LBL("L_codeend")

out = HEADER + f"""; Launch geometry (generated by my generator script gen15.py)
; @launch grid=({NWG},1,1) block=(512,1,1) lds={LDS_BYTES}
.amdgcn_target "amdgcn-amd-amdhsa--gfx950"
.text
""" + kernel_text(KN, g.text()) + """.section .rodata,"a"
""" + kd(KN, 256, 102)
open(sys.argv[1], "w").write(out)
print(LDS_BYTES, len(g.L))
```

```python
import sys
from asmlib import *
opt = dict(mfma=1, stamps=0, prio=1, barpos=8, hfirst=0, ostf=3, grp=0, cpf=1, hp0=2, hdel=1, npoll=0, diag=0, epi=1, fstr=4, dbg=0)
for a in sys.argv[2:]:
    k, v = a.split("="); opt[k] = int(v)
g = Asm(); I = g.I; C = g.C
NWG = 256
STG = 49152; NSTG = 3; BOFF = 32768
CNT = STG * NSTG
LDS_BYTES = CNT + 64
WB_OFF = (1 << 20) if opt["stamps"] else 0
WB_BYTES = 28 * 16 * 16384
FSTR = opt["fstr"]
FB_OFF = WB_BYTES
FL_OFF = FB_OFF + 28 * 128
FPAN = max(128, 16 * FSTR)
WS_BYTES = FL_OFF + 28 * FPAN
FKEY = 0x5ac3a53c
OSTF = {0: "", 1: " sc1", 2: " sc0 sc1", 3: " nt", 4: " sc1 nt"}[opt["ostf"]]
S_X, S_Q, S_S, S_Z, S_ACT, S_OUT, S_WB, S_DBG = 16, 20, 24, 28, 32, 36, 68, 72
S_WV = 44; S_MI = 45; S_NI = 46; S_T0 = 47; S_T1 = 48; S_U = 49; S_T2 = 55
S_OB = 50; S_OA = 51; S_STG = 52; S_MA = 53; S_XCD = 54; S_SLOT = 63; S_P = 66; S_CS = 67; S_PB = 76; S_NP = 77; S_FL = 78; S_PEND = 79; S_SP = 80
S_F = 84
VQ = 56; VR = 88; VSC = 128; VO = 32; VOA = 16
VFA = 113; VF0 = 114; VCN = 115; VTMP = 116

def kreg(idx): return 100 if idx == 0 else 84 + 2*idx
def stamp_setup():
    if not opt["stamps"]: return
    g.srd(56, 42, 1 << 20)
    I("s_lshl_b32 s62, s2, 3"); I(f"s_add_u32 s62, s62, s{S_WV}"); I("s_lshl_b32 s62, s62, 6")
def keep(idx):
    if not opt["stamps"]: return
    I(f"s_memrealtime s[{kreg(idx)}:{kreg(idx)+1}]")
def flush_keeps(idxs, vt=122, dmap=None):
    if not opt["stamps"]: return
    I("s_waitcnt lgkmcnt(0)")
    if opt["dbg"]:
        if not dmap: return
        g.srd(72, 40, 256)
        I("s_mov_b64 exec, 1"); I(f"v_mov_b32 v{vt+1}, 0")
        for word, idx, inv in dmap:
            I(f"v_mov_b32 v{vt}, s{kreg(idx)}")
            if inv: I(f"v_not_b32 v{vt}, v{vt}")
            I(f"buffer_atomic_umax v{vt}, v{vt+1}, s[72:75], 0 offen offset:{word*4} sc1")
        return
    for idx in idxs:
        I(f"v_mov_b32 v{vt}, s{kreg(idx)}"); I(f"v_mov_b32 v{vt+1}, 0"); I(f"v_mov_b32 v{vt+2}, s62")
        I(f"buffer_store_dwordx2 v[{vt}:{vt+1}], v{vt+2}, s[56:59], 0 offen offset:{idx*8}")
def next_stage():
    I(f"s_add_u32 s{S_STG}, s{S_STG}, {STG}"); I(f"s_cmp_ge_u32 s{S_STG}, {STG*NSTG}"); I(f"s_cselect_b32 s{S_STG}, 0, s{S_STG}")
def ld_A():
    for j in range(8):
        if j % 4 == 0:
            if j == 0: I(f"s_add_u32 m0, s{S_STG}, s{S_MA}")
            else:      I("s_add_u32 m0, m0, 4096")
            I("s_nop 0")
        I(f"buffer_load_dwordx4 v{VOA+j}, s[{S_X}:{S_X+3}], s{S_OA} offen offset:{(j%4)*1024} lds")
def step_of_pos():
    if opt["grp"]:
        I(f"s_add_u32 s{S_CS}, s{S_U}, s{S_MI}"); I(f"s_add_u32 s{S_CS}, s{S_CS}, 3"); I(f"s_and_b32 s{S_CS}, s{S_CS}, 3")
        I(f"s_and_b32 s{S_T0}, s{S_MI}, 4"); I(f"s_or_b32 s{S_CS}, s{S_CS}, s{S_T0}")
        I(f"s_cmp_ge_u32 s{S_U}, 5"); I(f"s_cselect_b32 s{S_T0}, 4, 0"); I(f"s_xor_b32 s{S_CS}, s{S_CS}, s{S_T0}")
    else:
        I(f"s_add_u32 s{S_CS}, s{S_U}, s{S_MI}"); I(f"s_add_u32 s{S_CS}, s{S_CS}, 7"); I(f"s_and_b32 s{S_CS}, s{S_CS}, 7")
    I(f"s_add_u32 s{S_T0}, s{S_U}, s{S_MI}"); I(f"s_and_b32 s{S_T0}, s{S_T0}, 7"); I(f"s_or_b32 s{S_T0}, s{S_T0}, 8")
    I(f"s_cmp_ge_u32 s{S_U}, 9")
    I(f"s_cselect_b32 s{S_CS}, s{S_T0}, s{S_CS}")

keep(0)
I(f"s_cmp_ge_u32 s2, {NWG}")
I("s_cbranch_scc1 L_end")
I("s_load_dwordx4 s[4:7], s[0:1], 0")
I("s_load_dwordx4 s[8:11], s[0:1], 16")
I("s_load_dwordx4 s[12:15], s[0:1], 32")
I("s_load_dwordx4 s[40:43], s[0:1], 48")
I("v_lshrrev_b32 v1, 6, v0")
I("v_and_b32 v2, 63, v0")
I(f"s_and_b32 s{S_XCD}, s2, 7")
I(f"v_readfirstlane_b32 s{S_WV}, v1")
I(f"s_lshr_b32 s{S_SLOT}, s2, 3")
I("v_and_b32 v3, 31, v2"); I("v_lshrrev_b32 v4, 5, v2")
I(f"s_and_b32 s{S_P}, s{S_WV}, 3")
if opt["hfirst"]:
    I(f"s_add_u32 s{S_SLOT}, s{S_SLOT}, 28"); I(f"s_and_b32 s{S_SLOT}, s{S_SLOT}, 31")
I(f"s_cmp_ge_u32 s{S_SLOT}, 28")
I("s_cbranch_scc1 L_help")
I(f"s_and_b32 s{S_MI}, s{S_XCD}, 1"); I(f"s_lshl_b32 s{S_MI}, s{S_MI}, 2")
I(f"s_and_b32 s{S_T2}, s{S_SLOT}, 3"); I(f"s_add_u32 s{S_MI}, s{S_MI}, s{S_T2}")
I(f"s_lshr_b32 s{S_NI}, s{S_XCD}, 1"); I(f"s_mul_i32 s{S_NI}, s{S_NI}, 7")
I(f"s_lshr_b32 s{S_T2}, s{S_SLOT}, 2"); I(f"s_add_u32 s{S_NI}, s{S_NI}, s{S_T2}")
I(f"s_cmp_ge_u32 s{S_WV}, 4")
I(f"s_cselect_b32 s{S_CS}, 0, 8"); I(f"s_cselect_b32 s{S_STG}, 0, {STG}"); I(f"s_add_u32 s{S_CS}, s{S_CS}, s{S_MI}")
C("v5 = q offset (64*step+16p+8h)*14336 + ni*512 + 16i ; v6 = scale offset ; v7 = act offset")
I(f"s_lshl_b32 s{S_T2}, s{S_CS}, 2"); I(f"s_add_u32 s{S_T2}, s{S_T2}, s{S_P}")
I(f"s_mul_i32 s{S_T0}, s{S_T2}, {16*N*4}"); I(f"s_lshl_b32 s{S_T1}, s{S_NI}, 9"); I(f"s_add_u32 s{S_T0}, s{S_T0}, s{S_T1}")
I(f"v_mul_u32_u24 v5, {8*N*4}, v4"); I("v_lshl_add_u32 v5, v3, 4, v5"); I(f"v_add_u32 v5, s{S_T0}, v5")
I(f"s_lshr_b32 s{S_T0}, s{S_T2}, 1"); I(f"s_mul_i32 s{S_T0}, s{S_T0}, {N*2}"); I(f"s_lshl_b32 s{S_T1}, s{S_NI}, 8"); I(f"s_add_u32 s{S_T0}, s{S_T0}, s{S_T1}")
I("v_lshlrev_b32 v6, 3, v3"); I(f"v_add_u32 v6, s{S_T0}, v6")
I(f"s_lshl_b32 s{S_T0}, s{S_T2}, 5"); I("v_lshlrev_b32 v7, 4, v4"); I(f"v_add_u32 v7, s{S_T0}, v7")
I("v_mov_b32 v14, 0"); I(f"v_mov_b32 v{VCN}, {CNT}")
I(f"ds_write_b32 v{VCN}, v14")
I("s_waitcnt lgkmcnt(0)")
g.srd(S_S, 8, 32*N*2); g.srd(S_Z, 10, 32*N*2); g.srd(S_ACT, 12, K*2)
I(f"buffer_load_dwordx2 v[{VR}:{VR+1}], v6, s[{S_S}:{S_S+3}], 0 offen nt")
I(f"buffer_load_dwordx2 v[{VR+2}:{VR+3}], v6, s[{S_Z}:{S_Z+3}], 0 offen nt")
I(f"buffer_load_dwordx4 v[{VR+4}:{VR+7}], v7, s[{S_ACT}:{S_ACT+3}], 0 offen nt")
g.srd(S_Q, 6, K*N*4)
C("E waves queue their weight loads first")
I(f"s_cmp_ge_u32 s{S_WV}, 4"); I("s_cbranch_scc1 L_o1")
I("s_barrier")
g.LBL("L_o1")
for e in range(8):
    I(f"s_mov_b32 s{S_T0}, {e*N*4}")
    I(f"buffer_load_dwordx4 v[{VQ+4*e}:{VQ+4*e+3}], v5, s[{S_Q}:{S_Q+3}], s{S_T0} offen nt")
I(f"s_cmp_lt_u32 s{S_WV}, 4"); I("s_cbranch_scc1 L_o2")
I("s_barrier")
g.LBL("L_o2")
I(f"s_add_u32 s{S_WB}, s42, {WB_OFF}"); I(f"s_addc_u32 s{S_WB+1}, s43, 0"); I(f"s_mov_b32 s{S_WB+2}, {WS_BYTES}"); I(f"s_mov_b32 s{S_WB+3}, 0x00020000")
C("hand-off words: chunk published <=> flag == base ^ KEY; base as found at entry (scalar path)")
I(f"s_lshl_b32 s{S_T0}, s{S_NI}, 7"); I(f"s_add_u32 s{S_T0}, s{S_T0}, {FB_OFF}")
I(f"s_add_u32 s82, s{S_WB}, s{S_T0}"); I(f"s_addc_u32 s83, s{S_WB+1}, 0")
I(f"s_load_dwordx16 s[{S_F}:{S_F+15}], s[82:83], 0")
I("v_and_b32 v29, 15, v2"); I(f"v_mul_u32_u24 v{VFA}, {FSTR}, v29")
I("v_lshlrev_b32 v29, 2, v29"); I(f"v_add_u32 v29, s{S_T0}, v29")
I(f"s_mul_i32 s{S_T0}, s{S_NI}, {FPAN}"); I(f"s_add_u32 s{S_T0}, s{S_T0}, {FL_OFF}"); I(f"v_add_u32 v{VFA}, s{S_T0}, v{VFA}")
I(f"s_lshl_b32 s{S_T0}, s{S_NI}, 4"); I(f"s_add_u32 s{S_T0}, s{S_T0}, s{S_CS}"); I(f"s_lshl_b32 s{S_SP}, s{S_T0}, 14")
I("v_lshlrev_b32 v24, 4, v2"); I(f"s_lshl_b32 s{S_T0}, s{S_NI}, 18"); I(f"v_add_u32 v24, s{S_T0}, v24")
g.srd(S_X, 4, M*K*2)
stamp_setup()
C("v8 = image offset in chunk: (2p+h)*2048 + (i&1)*1024 + (((i>>1)^(4*(i&1)))*16)  (+ c*256)")
I(f"s_lshl_b32 s{S_T0}, s{S_P}, 12")
I("v_lshlrev_b32 v8, 11, v4"); I(f"v_add_u32 v8, s{S_T0}, v8")
I("v_and_b32 v9, 1, v3"); I("v_lshl_add_u32 v8, v9, 10, v8"); I("v_lshlrev_b32 v9, 2, v9")
I("v_lshrrev_b32 v10, 1, v3"); I("v_xor_b32 v10, v10, v9"); I("v_lshl_add_u32 v8, v10, 4, v8")
I(f"v_add_u32 v9, s{S_STG}, v8")
C("A DMA offsets: (m0+64p+8j+(l>>3))*2048 + (((l&7)^((4(j&1)+(l>>4))&7))*16) - (j%4)*1024")
I(f"s_lshl_b32 s{S_T0}, s{S_P}, 6"); I(f"s_lshl_b32 s{S_T1}, s{S_MI}, 8"); I(f"s_add_u32 s{S_T0}, s{S_T0}, s{S_T1}"); I(f"s_lshl_b32 s{S_T0}, s{S_T0}, 11")
I("v_lshrrev_b32 v11, 3, v2"); I("v_lshlrev_b32 v11, 11, v11"); I(f"v_add_u32 v11, s{S_T0}, v11")
I("v_and_b32 v12, 7, v2"); I("v_lshrrev_b32 v13, 4, v2"); I("v_xor_b32 v12, v12, v13"); I("v_xor_b32 v13, 4, v12")
I("v_lshl_add_u32 v12, v12, 4, v11"); I("v_lshl_add_u32 v13, v13, 4, v11")
for j in range(8): I(f"v_add_u32 v{VOA+j}, {8*j*2048 - (j%4)*1024}, v{12 + (j&1)}")
I(f"s_lshl_b32 s{S_MA}, s{S_P}, 13")
I(f"s_lshl_b32 s{S_OA}, s{S_CS}, 7")
C("MFMA-wave addresses (cheap, computed by every wave while the loads fly)")
VA0 = 104; VA = 108; VOUT = 112
I("v_lshrrev_b32 v3, 4, v2"); I("v_and_b32 v4, 15, v2")
I("v_lshlrev_b32 v5, 7, v4"); I(f"v_add_u32 v5, s{S_MA}, v5"); I("v_bfe_u32 v6, v4, 1, 3")
for t in range(2):
    I(f"v_add_u32 v10, {4*t}, v3"); I("v_xor_b32 v10, v10, v6"); I(f"v_lshl_add_u32 v{VA0+t}, v10, 4, v5")
I("v_lshlrev_b32 v10, 11, v3"); I(f"v_add_u32 v10, {BOFF}, v10")
I(f"v_lshl_add_u32 v{VA0+2}, v4, 4, v10")
I("v_xor_b32 v11, 4, v4"); I(f"v_lshl_add_u32 v{VA0+3}, v11, 4, v10")
for t in range(4): I(f"v_mov_b32 v{VA+t}, v{VA0+t}")
I(f"s_lshl_b32 s{S_T0}, s{S_P}, 6"); I(f"s_lshl_b32 s{S_T1}, s{S_MI}, 8"); I(f"s_add_u32 s{S_T0}, s{S_T0}, s{S_T1}")
I(f"s_mul_i32 s{S_T0}, s{S_T0}, {N*2}"); I(f"s_lshl_b32 s{S_T1}, s{S_NI}, 8"); I(f"s_add_u32 s{S_T0}, s{S_T0}, s{S_T1}")
I(f"v_mul_u32_u24 v10, {4*N*2}, v3"); I("v_lshl_add_u32 v10, v4, 4, v10"); I(f"v_add_u32 v{VOUT}, s{S_T0}, v10")
g.srd(S_OUT, 14, M*N*2)
I("s_waitcnt lgkmcnt(0)")
I(f"v_mov_b32 v{VF0}, 0")
for l in range(16): I(f"v_writelane_b32 v{VF0}, s{S_F+l}, {l}")
I(f"v_xor_b32 v{VF0}, {FKEY:#x}, v{VF0}")
C("dequantise: w = bf16(((float)q*s - z*s) * a[k]), row pair by row pair as the loads land")
I("s_waitcnt vmcnt(8)")
for d in range(4):
    I(f"v_lshlrev_b32 v{VSC+2*d}, 16, v{VR+d}"); I(f"v_and_b32 v{VSC+2*d+1}, 0xffff0000, v{VR+d}")
for d in range(4):
    I(f"v_lshlrev_b32 v{VSC+8+2*d}, 16, v{VR+4+d}"); I(f"v_and_b32 v{VSC+9+2*d}, 0xffff0000, v{VR+4+d}")
for T in range(4): I(f"v_mul_f32 v{VSC+4+T}, -v{VSC+4+T}, v{VSC+T}")
for e in range(8):
    I(f"s_waitcnt vmcnt({7-e})")
    if e == 7 and opt["diag"]: keep(7)
    q = VQ + 4*e
    for c in range(4): I(f"v_cvt_f32_i32 v{q+c}, v{q+c}")
    for c in range(4): I(f"v_fma_f32 v{q+c}, v{q+c}, v{VSC+c}, v{VSC+4+c}")
    for c in range(4): I(f"v_mul_f32 v{q+c}, v{q+c}, v{VSC+8+e}")
    if e & 1:
        for c in range(4): I(f"v_cvt_pk_bf16_f32 v{VO+4*c+e//2}, v{q-4+c}, v{q+c}")
I(f"s_cmp_lt_u32 s{S_WV}, 4")
I("s_cbranch_scc1 L_cons")

for c in range(4): I(f"buffer_store_dwordx4 v[{VO+4*c}:{VO+4*c+3}], v8, s[{S_WB}:{S_WB+3}], s{S_SP} offen offset:{c*256} sc1")
keep(1)
ld_A()
for c in range(4): I(f"ds_write_b128 v9, v[{VO+4*c}:{VO+4*c+3}] offset:{BOFF + c*256}")
I(f"s_mov_b32 s{S_STG}, {STG}")
I("s_waitcnt vmcnt(0)")
keep(2)
I(f"v_mov_b32 v{VTMP}, 1")
I("s_mov_b64 exec, 1")
I(f"ds_add_rtn_u32 v{VTMP+1}, v{VCN}, v{VTMP}")
I("s_waitcnt lgkmcnt(0)")
I(f"v_readfirstlane_b32 s{S_T0}, v{VTMP+1}")
I(f"s_cmp_lg_u32 s{S_T0}, 3")
I("s_cbranch_scc1 L_nf0")
I(f"s_lshl_b32 s{S_T1}, 1, s{S_MI}")
I(f"s_mov_b32 exec_lo, s{S_T1}")
I(f"buffer_store_dword v{VF0}, v{VFA}, s[{S_WB}:{S_WB+3}], 0 offen sc1")
g.LBL("L_nf0")
I("s_mov_b64 exec, -1")
I("s_barrier")
I(f"s_mov_b32 s{S_U}, 2")
I(f"s_cmp_eq_u32 s{S_WV}, 4")
I("s_cbranch_scc1 L_bload")
C("waves 5-7: A shares; waves 5,6 also copy the L image (stage 1) out to ws, 8 KB each")
I(f"s_sub_u32 s{S_T0}, s{S_WV}, 5"); I(f"s_lshl_b32 s{S_T0}, s{S_T0}, 13")
I("v_lshlrev_b32 v25, 4, v2"); I(f"v_add_u32 v25, s{S_T0}, v25")
I(f"v_add_u32 v26, {STG + BOFF}, v25")
I(f"s_add_u32 s{S_SP}, s{S_SP}, {8*16384}"); I(f"s_add_u32 s81, s{S_SP}, 4096")
g.LBL("L_aloop")
I(f"s_cmp_lg_u32 s{S_U}, 5"); I("s_cbranch_scc1 L_a1")
I("s_waitcnt vmcnt(0)")
g.LBL("L_a1")
I(f"s_cmp_lg_u32 s{S_U}, 6"); I("s_cbranch_scc1 L_a2")
I(f"s_cmp_lg_u32 s{S_WV}, 5"); I("s_cbranch_scc1 L_a2")
I(f"s_lshl_b32 s{S_T1}, 256, s{S_MI}")
I(f"s_mov_b32 exec_lo, s{S_T1}"); I("s_mov_b32 exec_hi, 0")
I(f"buffer_store_dword v{VF0}, v{VFA}, s[{S_WB}:{S_WB+3}], 0 offen sc1")
I("s_mov_b64 exec, -1")
g.LBL("L_a2")
step_of_pos(); next_stage(); I(f"s_lshl_b32 s{S_OA}, s{S_CS}, 7"); ld_A()
I("s_waitcnt vmcnt(8)")
I(f"s_cmp_lg_u32 s{S_U}, 3"); I("s_cbranch_scc1 L_a3")
I(f"s_cmp_eq_u32 s{S_WV}, 7"); I("s_cbranch_scc1 L_a3")
for j in range(8): I(f"ds_read_b128 v[{128+4*j}:{131+4*j}], v26 offset:{j*1024}")
I("s_waitcnt lgkmcnt(0)")
I("s_barrier")
for j in range(8):
    I(f"buffer_store_dwordx4 v[{128+4*j}:{131+4*j}], v25, s[{S_WB}:{S_WB+3}], s{S_SP if j < 4 else 81} offen offset:{(j%4)*1024} sc1")
I("s_branch L_a4")
g.LBL("L_a3")
I("s_barrier")
g.LBL("L_a4")
I(f"s_add_u32 s{S_U}, s{S_U}, 1")
I(f"s_cmp_lt_u32 s{S_U}, 16")
I("s_cbranch_scc1 L_aloop")
I("s_waitcnt vmcnt(0)")
I("s_barrier")
flush_keeps([0, 1, 2])
I("s_endpgm")

g.LBL("L_bload")
C("wave 4: S_U next position to issue, S_PB last barrier passed, S_FL mask of published steps")
I(f"s_mov_b32 s{S_PB}, 0"); I(f"s_mov_b32 s{S_FL}, 0"); I(f"s_mov_b32 s{S_NP}, 0")
g.LBL("L_sm")
I(f"s_mov_b32 s{S_PEND}, 0")
I(f"s_cmp_ge_u32 s{S_U}, 16")
I("s_cbranch_scc1 L_trybar")
step_of_pos()
I(f"s_bitcmp1_b32 s{S_FL}, s{S_CS}")
I("s_cbranch_scc0 L_dopoll")
I(f"s_add_u32 s{S_T0}, s{S_PB}, 2")
I(f"s_cmp_gt_u32 s{S_U}, s{S_T0}")
I("s_cbranch_scc1 L_trybar")
if opt["stamps"]:
    I(f"s_cmp_lg_u32 s{S_U}, 2"); I("s_cbranch_scc1 L_ns1"); keep(5); g.LBL("L_ns1")
    I(f"s_cmp_lg_u32 s{S_U}, 8"); I("s_cbranch_scc1 L_ns2"); keep(6); g.LBL("L_ns2")
next_stage()
I(f"s_lshl_b32 s{S_OB}, s{S_CS}, 14"); I(f"s_lshl_b32 s{S_OA}, s{S_CS}, 7")
for jj in range(4):
    I(f"s_add_u32 m0, s{S_STG}, {BOFF + jj*4096}")
    if jj: I(f"s_add_u32 s{S_OB}, s{S_OB}, 4096")
    else: I("s_nop 0")
    for j in range(4): I(f"buffer_load_dwordx4 v24, s[{S_WB}:{S_WB+3}], s{S_OB} offen offset:{j*1024} lds")
ld_A()
I(f"s_add_u32 s{S_U}, s{S_U}, 1")
I("s_branch L_sm")
g.LBL("L_dopoll")
I("s_mov_b64 exec, 0xffff")
I(f"buffer_load_dword v28, v{VFA}, s[{S_WB}:{S_WB+3}], 0 offen sc1")
I(f"s_add_u32 s{S_NP}, s{S_NP}, 1")
I(f"s_mov_b32 s{S_PEND}, 1")
if opt["npoll"]:
    I(f"s_cmp_le_u32 s{S_NP}, {opt['npoll']}")
    I("s_cbranch_scc1 L_nobar")
g.LBL("L_trybar")
I(f"s_sub_u32 s{S_T0}, s{S_U}, s{S_PB}")
I(f"s_cmp_le_u32 s{S_T0}, 1")
I("s_cbranch_scc1 L_nobar")
I(f"s_lshl_b32 s{S_T0}, s{S_T0}, 1"); I(f"s_add_u32 s{S_T0}, s{S_T0}, s{S_PEND}")
I(f"s_cmp_eq_u32 s{S_T0}, 6"); I("s_cbranch_scc1 L_w24")
I(f"s_cmp_eq_u32 s{S_T0}, 7"); I("s_cbranch_scc1 L_w25")
I(f"s_cmp_eq_u32 s{S_T0}, 5"); I("s_cbranch_scc1 L_w1")
I("s_waitcnt vmcnt(0)")
g.LBL("L_w1")
I("s_waitcnt vmcnt(1)")
g.LBL("L_w24")
I("s_waitcnt vmcnt(24)")
g.LBL("L_w25")
I("s_waitcnt vmcnt(25)")
I("s_barrier")
I(f"s_add_u32 s{S_PB}, s{S_PB}, 1")
I(f"s_cmp_ge_u32 s{S_PB}, 15")
I("s_cbranch_scc1 L_bdone")
g.LBL("L_nobar")
I(f"s_cmp_eq_u32 s{S_PEND}, 0")
I("s_cbranch_scc1 L_sm")
I(f"s_cmp_lt_u32 s{S_NP}, 0x40000")
I("s_cbranch_scc1 L_waitpoll")
I(f"s_mov_b32 s{S_FL}, 0xffff")
g.LBL("L_waitpoll")
I("s_waitcnt vmcnt(0)")
I(f"v_cmp_eq_u32 vcc, v28, v{VF0}")
I(f"s_or_b32 s{S_FL}, s{S_FL}, vcc_lo")
I("s_mov_b64 exec, -1")
I("s_branch L_sm")
g.LBL("L_bdone")
C("every sharer has published, hence read the base words: re-arm this WG's two words (base := flag value)")
I(f"s_lshl_b32 s{S_T1}, 0x101, s{S_MI}")
I(f"s_mov_b32 exec_lo, s{S_T1}"); I("s_mov_b32 exec_hi, 0")
I(f"buffer_store_dword v{VF0}, v29, s[{S_WB}:{S_WB+3}], 0 offen sc1")
I("s_mov_b64 exec, -1")
if opt["stamps"]: I("s_waitcnt lgkmcnt(0)"); I(f"s_mov_b32 s98, s{S_NP}")
flush_keeps([0, 1, 2, 5, 6, 7], dmap=[(0,0,1),(1,0,0),(2,1,0),(3,2,0),(9,5,0),(10,1,1),(11,5,1)])
I("s_endpgm")

g.LBL("L_cons")
for c in range(4): I(f"ds_write_b128 v9, v[{VO+4*c}:{VO+4*c+3}] offset:{BOFF + c*256}")
keep(0)
ld_A()
ACC = 128
def acc(a, T): return ACC + (a * 8 + T) * 4
FS = [8, 56]
def fA(s, a): return FS[s] + 4 * a
def fB(s, T): return FS[s] + 16 + 4 * T
def rdA(s, a, t): I(f"ds_read_b128 v[{fA(s,a)}:{fA(s,a)+3}], v{VA+t} offset:{a*2048}")
def rdB(s, T, t): I(f"ds_read_b128 v[{fB(s,T)}:{fB(s,T)+3}], v{VA+2+(T>>2)} offset:{t*8192 + T*256}")
def mfma(s, a, T, first=False):
    if opt["mfma"]:
        d = acc(a, T)
        I(f"v_mfma_f32_16x16x32_bf16 v[{d}:{d+3}], v[{fA(s,a)}:{fA(s,a)+3}], v[{fB(s,T)}:{fB(s,T)+3}], " + ("0" if first else f"v[{d}:{d+3}]"))
MORD = []
for a in range(4):
    MORD += [(a, T) for T in (range(8) if a % 2 == 0 else range(7, -1, -1))]
def reads(s, t):
    return [lambda: rdA(s,0,t)] + [(lambda T: (lambda: rdB(s,T,t)))(T) for T in range(8)] + [(lambda a: (lambda: rdA(s,a,t)))(a) for a in range(1,4)]
BP = opt["barpos"]
def half0(first):
    I("s_waitcnt lgkmcnt(0)")
    rd = reads(1, 1)
    for idx, (a, T) in enumerate(MORD):
        mfma(0, a, T, first)
        if idx < len(rd): rd[idx]()
        if idx == 16: next_stage()
        if idx == 18: I(f"s_add_u32 s{S_U}, s{S_U}, 1")
        if idx == 20:
            for tt in range(4): I(f"v_add_u32 v{VA+tt}, s{S_STG}, v{VA0+tt}")
if opt["prio"]: I(f"s_setprio {opt['prio']}")
I(f"s_mov_b32 s{S_U}, 0"); I(f"s_mov_b32 s{S_STG}, 0")
I("s_waitcnt lgkmcnt(0)")
I("s_barrier")
keep(1)
if opt["stamps"]: I("s_memtime s[64:65]")
for r in reads(0, 0): r()
half0(True)
I("s_waitcnt vmcnt(0)")
I("s_branch L_chalf1")
g.LBL("L_cloop")
half0(False)
g.LBL("L_chalf1")
I("s_waitcnt lgkmcnt(0)")
rd = reads(0, 0)
for idx, (a, T) in enumerate(MORD):
    mfma(1, a, T)
    if idx == BP:
        I(f"s_cmp_ge_u32 s{S_U}, 16")
        I("s_cbranch_scc1 L_ctail")
        I("s_barrier")
        if opt["stamps"]:
            I(f"s_cmp_lg_u32 s{S_U}, 1"); I("s_cbranch_scc1 L_cs1"); keep(4); g.LBL("L_cs1")
            I(f"s_cmp_lg_u32 s{S_U}, 2"); I("s_cbranch_scc1 L_cs2"); keep(5); g.LBL("L_cs2")
            if not opt["diag"]: I(f"s_cmp_lg_u32 s{S_U}, 9"); I("s_cbranch_scc1 L_cs3"); keep(7); g.LBL("L_cs3")
    if idx > BP and idx - BP - 1 < len(rd): rd[idx-BP-1]()
I("s_branch L_cloop")
g.LBL("L_ctail")
def epi_ops(a):
    ops = []
    for r in range(4):
        d = 8 + 4 * ((a*4 + r) % 12)
        for p in range(4): ops.append(f"v_cvt_pk_bf16_f32 v{d+p}, v{acc(a,2*p)+r}, v{acc(a,2*p+1)+r}")
        ops.append(f"s_mov_b32 s{S_T0}, {(16*a+r)*N*2}")
        ops.append(f"buffer_store_dwordx4 v[{d}:{d+3}], v{VOUT}, s[{S_OUT}:{S_OUT+3}], s{S_T0} offen{OSTF}")
    return ops
pend = []; done_a = set()
for idx, (a, T) in enumerate(MORD):
    if idx <= BP: continue
    mfma(1, a, T)
    if opt["epi"]:
        for ap in range(3):
            if ap not in done_a and idx >= 8*ap + 7 + 8:
                pend += epi_ops(ap); done_a.add(ap)
        for o in pend[:3]: I(o)
        pend = pend[3:]
keep(2)
if opt["stamps"]: I("s_memtime s[60:61]")
for o in pend: I(o)
rest = [a for a in range(4) if a not in done_a]
for a in rest[:-1]:
    for o in epi_ops(a): I(o)
I("s_nop 7")
for o in epi_ops(rest[-1]): I(o)
if not opt["epi"]: pass
if opt["stamps"]:
    I("s_waitcnt vmcnt(0)"); keep(3); I("s_waitcnt lgkmcnt(0)")
    I("s_sub_u32 s96, s60, s64")
    if opt["dbg"]:
        I(f"s_cmp_lg_u32 s{S_WV}, 0"); I("s_cbranch_scc1 L_end")
    flush_keeps([0, 1, 2, 3, 4, 5, 6, 7], dmap=[(4,1,0),(5,5,0),(6,7,0),(7,2,0),(8,3,0),(12,6,0),(13,5,1),(14,2,1),(15,6,1)])
I("s_endpgm")

g.LBL("L_help")
if opt["cpf"]:
    C("pull the kernel's code into this die's L2 (range-checked)")
    I("s_getpc_b64 s[56:57]")
    g.LBL("L_pc")
    I(f"s_sub_u32 s56, s56, L_pc-{KN}"); I("s_subb_u32 s57, s57, 0")
    I(f"s_mov_b32 s58, L_codeend-{KN}"); I("s_mov_b32 s59, 0x00020000")
    I("v_lshlrev_b32 v10, 7, v0")
    I("buffer_load_dword v9, v10, s[56:59], 0 offen")
I(f"s_sub_u32 s{S_SLOT}, s{S_SLOT}, 28")
C("pass 0: tile mi=4*(xcd&1)+hs, rows 64*(wave&3)+lane, line mi (waves 0-3) / 8+mi (waves 4-7)")
I(f"s_and_b32 s{S_MI}, s{S_XCD}, 1"); I(f"s_lshl_b32 s{S_MI}, s{S_MI}, 2"); I(f"s_add_u32 s{S_MI}, s{S_MI}, s{S_SLOT}")
I(f"s_lshl_b32 s{S_T0}, s{S_MI}, 8"); I(f"s_lshl_b32 s{S_T1}, s{S_P}, 6"); I(f"s_add_u32 s{S_T0}, s{S_T0}, s{S_T1}")
I(f"s_lshl_b32 s{S_T0}, s{S_T0}, 11")
I("v_lshlrev_b32 v5, 11, v2"); I(f"v_add_u32 v5, s{S_T0}, v5")
I(f"s_lshr_b32 s{S_T0}, s{S_WV}, 2"); I(f"s_lshl_b32 s{S_T0}, s{S_T0}, 3"); I(f"s_add_u32 s{S_T0}, s{S_T0}, s{S_MI}"); I(f"s_lshl_b32 s{S_OA}, s{S_T0}, 7")
C("passes 1,2: rows 1024*(xcd&1) + 256*(xcd>>1) + 64*hs + 8*wave + (l>>3), line (l&7), then +8")
I(f"s_and_b32 s{S_T0}, s{S_XCD}, 1"); I(f"s_lshl_b32 s{S_T0}, s{S_T0}, 10")
I(f"s_lshr_b32 s{S_T1}, s{S_XCD}, 1"); I(f"s_lshl_b32 s{S_T1}, s{S_T1}, 8"); I(f"s_add_u32 s{S_T0}, s{S_T0}, s{S_T1}")
I(f"s_lshl_b32 s{S_T1}, s{S_SLOT}, 6"); I(f"s_add_u32 s{S_T0}, s{S_T0}, s{S_T1}")
I(f"s_lshl_b32 s{S_T1}, s{S_WV}, 3"); I(f"s_add_u32 s{S_T0}, s{S_T0}, s{S_T1}")
I(f"s_lshl_b32 s{S_T0}, s{S_T0}, 11")
I("v_lshrrev_b32 v11, 3, v2"); I("v_lshlrev_b32 v11, 11, v11"); I("v_and_b32 v12, 7, v2"); I("v_lshl_add_u32 v11, v12, 7, v11")
I(f"v_add_u32 v11, s{S_T0}, v11")
I("s_waitcnt lgkmcnt(0)")
g.srd(S_X, 4, M*K*2)
stamp_setup()
if opt["hp0"]:
    I(f"buffer_load_dword v15, v5, s[{S_X}:{S_X+3}], s{S_OA} offen")
    if opt["hdel"]: I("s_waitcnt vmcnt(0)")
    keep(3)
    I("s_barrier")
else: keep(3)
I(f"buffer_load_dword v14, v11, s[{S_X}:{S_X+3}], 0 offen")
if opt["hdel"]: I("s_waitcnt vmcnt(0)"); keep(1)
I("s_barrier")
I(f"buffer_load_dword v13, v11, s[{S_X}:{S_X+3}], 0 offen offset:1024")
if opt["stamps"]:
    if not opt["hdel"]: I("s_waitcnt vmcnt(1)"); keep(1)
    I("s_waitcnt vmcnt(0)"); keep(2); flush_keeps([0, 1, 2, 3])
g.LBL("L_end")
I("s_endpgm")
g.LBL("L_codeend")

out = HEADER + f"""; Launch geometry (generated by my generator script gen15.py)
; @launch grid=({NWG},1,1) block=(512,1,1) lds={LDS_BYTES}
.amdgcn_target "amdgcn-amd-amdhsa--gfx950"
.text
""" + kernel_text(KN, g.text()) + """.section .rodata,"a"
""" + kd(KN, 256, 102)
open(sys.argv[1], "w").write(out)
print(LDS_BYTES, len(g.L))
```

```python
import sys
from asmlib import *
opt = dict(mfma=1, stamps=0, prio=1, barpos=8, hfirst=0, ostf=3, grp=0, cpf=1, hp0=2, hdel=1, npoll=0, diag=0, epi=1, fstr=4, dbg=0, qnt=1, shuf=0, tm=-1, mult=5)
for a in sys.argv[2:]:
    k, v = a.split("="); opt[k] = int(v)
g = Asm(); I = g.I; C = g.C
NWG = 256
STG = 49152; NSTG = 3; BOFF = 32768
CNT = STG * NSTG
LDS_BYTES = CNT + 64
WB_OFF = (1 << 20) if opt["stamps"] else 0
WB_BYTES = 28 * 16 * 16384
FSTR = opt["fstr"]
FB_OFF = WB_BYTES
FL_OFF = FB_OFF + 28 * 128
FPAN = max(128, 16 * FSTR)
WS_BYTES = FL_OFF + 28 * FPAN
FKEY = 0x5ac3a53c
OSTF = {0: "", 1: " sc1", 2: " sc0 sc1", 3: " nt", 4: " sc1 nt"}[opt["ostf"]]
S_X, S_Q, S_S, S_Z, S_ACT, S_OUT, S_WB, S_DBG = 16, 20, 24, 28, 32, 36, 68, 72
S_WV = 44; S_MI = 45; S_NI = 46; S_T0 = 47; S_T1 = 48; S_U = 49; S_T2 = 55
S_OB = 50; S_OA = 51; S_STG = 52; S_MA = 53; S_XCD = 54; S_SLOT = 63; S_P = 66; S_CS = 67; S_PB = 76; S_NP = 77; S_FL = 78; S_PEND = 79; S_SP = 80
S_F = 84
VQ = 56; VR = 88; VSC = 128; VO = 32; VOA = 16
VFA = 113; VF0 = 114; VCN = 115; VTMP = 116

def kreg(idx): return 100 if idx == 0 else 84 + 2*idx
def stamp_setup():
    if not opt["stamps"]: return
    g.srd(56, 42, 1 << 20)
    I("s_lshl_b32 s62, s2, 3"); I(f"s_add_u32 s62, s62, s{S_WV}"); I("s_lshl_b32 s62, s62, 6")
def keep(idx):
    if not opt["stamps"]: return
    I(f"s_memrealtime s[{kreg(idx)}:{kreg(idx)+1}]")
def flush_keeps(idxs, vt=122, dmap=None):
    if not opt["stamps"]: return
    I("s_waitcnt lgkmcnt(0)")
    if opt["tm"] >= 0: return
    if opt["dbg"]:
        if not dmap: return
        g.srd(72, 40, 256)
        I("s_mov_b64 exec, 1"); I(f"v_mov_b32 v{vt+1}, 0")
        for word, idx, inv in dmap:
            I(f"v_mov_b32 v{vt}, s{kreg(idx)}")
            if inv: I(f"v_not_b32 v{vt}, v{vt}")
            I(f"buffer_atomic_umax v{vt}, v{vt+1}, s[72:75], 0 offen offset:{word*4} sc1")
        return
    for idx in idxs:
        I(f"v_mov_b32 v{vt}, s{kreg(idx)}"); I(f"v_mov_b32 v{vt+1}, 0"); I(f"v_mov_b32 v{vt+2}, s62")
        I(f"buffer_store_dwordx2 v[{vt}:{vt+1}], v{vt+2}, s[56:59], 0 offen offset:{idx*8}")
def next_stage():
    I(f"s_add_u32 s{S_STG}, s{S_STG}, {STG}"); I(f"s_cmp_ge_u32 s{S_STG}, {STG*NSTG}"); I(f"s_cselect_b32 s{S_STG}, 0, s{S_STG}")
def ld_A():
    for j in range(8):
        if j % 4 == 0:
            if j == 0: I(f"s_add_u32 m0, s{S_STG}, s{S_MA}")
            else:      I("s_add_u32 m0, m0, 4096")
            I("s_nop 0")
        I(f"buffer_load_dwordx4 v{VOA+j}, s[{S_X}:{S_X+3}], s{S_OA} offen offset:{(j%4)*1024} lds")
def step_of_pos():
    if opt["grp"]:
        I(f"s_add_u32 s{S_CS}, s{S_U}, s{S_MI}"); I(f"s_add_u32 s{S_CS}, s{S_CS}, 3"); I(f"s_and_b32 s{S_CS}, s{S_CS}, 3")
        I(f"s_and_b32 s{S_T0}, s{S_MI}, 4"); I(f"s_or_b32 s{S_CS}, s{S_CS}, s{S_T0}")
        I(f"s_cmp_ge_u32 s{S_U}, 5"); I(f"s_cselect_b32 s{S_T0}, 4, 0"); I(f"s_xor_b32 s{S_CS}, s{S_CS}, s{S_T0}")
    else:
        I(f"s_add_u32 s{S_CS}, s{S_U}, s{S_MI}"); I(f"s_add_u32 s{S_CS}, s{S_CS}, 7"); I(f"s_and_b32 s{S_CS}, s{S_CS}, 7")
    I(f"s_add_u32 s{S_T0}, s{S_U}, s{S_MI}"); I(f"s_and_b32 s{S_T0}, s{S_T0}, 7"); I(f"s_or_b32 s{S_T0}, s{S_T0}, 8")
    I(f"s_cmp_ge_u32 s{S_U}, 9")
    I(f"s_cselect_b32 s{S_CS}, s{S_T0}, s{S_CS}")

keep(0)
I(f"s_cmp_ge_u32 s2, {NWG}")
I("s_cbranch_scc1 L_end")
if opt["shuf"]:
    C("test only: rotate the low three id bits by the slot number (destroys die locality)")
    I("s_lshr_b32 s3, s2, 3"); I("s_add_u32 s3, s3, s2"); I("s_and_b32 s3, s3, 7"); I("s_andn2_b32 s2, s2, 7"); I("s_or_b32 s2, s2, s3")
I("s_load_dwordx4 s[4:7], s[0:1], 0")
I("s_load_dwordx4 s[8:11], s[0:1], 16")
I("s_load_dwordx4 s[12:15], s[0:1], 32")
I("s_load_dwordx4 s[40:43], s[0:1], 48")
I("v_lshrrev_b32 v1, 6, v0")
I("v_and_b32 v2, 63, v0")
I(f"s_and_b32 s{S_XCD}, s2, 7")
I(f"v_readfirstlane_b32 s{S_WV}, v1")
I(f"s_lshr_b32 s{S_SLOT}, s2, 3")
I("v_and_b32 v3, 31, v2"); I("v_lshrrev_b32 v4, 5, v2")
I(f"s_and_b32 s{S_P}, s{S_WV}, 3")
if opt["hfirst"]:
    I(f"s_add_u32 s{S_SLOT}, s{S_SLOT}, 28"); I(f"s_and_b32 s{S_SLOT}, s{S_SLOT}, 31")
I(f"s_cmp_ge_u32 s{S_SLOT}, 28")
I("s_cbranch_scc1 L_help")
I(f"s_and_b32 s{S_MI}, s{S_XCD}, 1"); I(f"s_lshl_b32 s{S_MI}, s{S_MI}, 2")
I(f"s_and_b32 s{S_T2}, s{S_SLOT}, 3"); I(f"s_add_u32 s{S_MI}, s{S_MI}, s{S_T2}")
I(f"s_lshr_b32 s{S_NI}, s{S_XCD}, 1"); I(f"s_mul_i32 s{S_NI}, s{S_NI}, 7")
I(f"s_lshr_b32 s{S_T2}, s{S_SLOT}, 2"); I(f"s_add_u32 s{S_NI}, s{S_NI}, s{S_T2}")
I(f"s_cmp_ge_u32 s{S_WV}, 4")
I(f"s_cselect_b32 s{S_CS}, 0, 8"); I(f"s_cselect_b32 s{S_STG}, 0, {STG}"); I(f"s_add_u32 s{S_CS}, s{S_CS}, s{S_MI}")
C("v5 = q offset (64*step+16p+8h)*14336 + ni*512 + 16i ; v6 = scale offset ; v7 = act offset")
I(f"s_lshl_b32 s{S_T2}, s{S_CS}, 2"); I(f"s_add_u32 s{S_T2}, s{S_T2}, s{S_P}")
I(f"s_mul_i32 s{S_T0}, s{S_T2}, {16*N*4}"); I(f"s_lshl_b32 s{S_T1}, s{S_NI}, 9"); I(f"s_add_u32 s{S_T0}, s{S_T0}, s{S_T1}")
I(f"v_mul_u32_u24 v5, {8*N*4}, v4"); I("v_lshl_add_u32 v5, v3, 4, v5"); I(f"v_add_u32 v5, s{S_T0}, v5")
I(f"s_lshr_b32 s{S_T0}, s{S_T2}, 1"); I(f"s_mul_i32 s{S_T0}, s{S_T0}, {N*2}"); I(f"s_lshl_b32 s{S_T1}, s{S_NI}, 8"); I(f"s_add_u32 s{S_T0}, s{S_T0}, s{S_T1}")
I("v_lshlrev_b32 v6, 3, v3"); I(f"v_add_u32 v6, s{S_T0}, v6")
I(f"s_lshl_b32 s{S_T0}, s{S_T2}, 5"); I("v_lshlrev_b32 v7, 4, v4"); I(f"v_add_u32 v7, s{S_T0}, v7")
I("v_mov_b32 v14, 0"); I(f"v_mov_b32 v{VCN}, {CNT}")
I(f"ds_write_b32 v{VCN}, v14")
I("s_waitcnt lgkmcnt(0)")
g.srd(S_S, 8, 32*N*2); g.srd(S_Z, 10, 32*N*2); g.srd(S_ACT, 12, K*2)
I(f"buffer_load_dwordx2 v[{VR}:{VR+1}], v6, s[{S_S}:{S_S+3}], 0 offen nt")
I(f"buffer_load_dwordx2 v[{VR+2}:{VR+3}], v6, s[{S_Z}:{S_Z+3}], 0 offen nt")
I(f"buffer_load_dwordx4 v[{VR+4}:{VR+7}], v7, s[{S_ACT}:{S_ACT+3}], 0 offen nt")
g.srd(S_Q, 6, K*N*4)
C("E waves queue their weight loads first")
I(f"s_cmp_ge_u32 s{S_WV}, 4"); I("s_cbranch_scc1 L_o1")
I("s_barrier")
g.LBL("L_o1")
for e in range(8):
    I(f"s_mov_b32 s{S_T0}, {e*N*4}")
    I(f"buffer_load_dwordx4 v[{VQ+4*e}:{VQ+4*e+3}], v5, s[{S_Q}:{S_Q+3}], s{S_T0} offen" + (" nt" if opt["qnt"] else ""))
I(f"s_cmp_lt_u32 s{S_WV}, 4"); I("s_cbranch_scc1 L_o2")
I("s_barrier")
g.LBL("L_o2")
I(f"s_add_u32 s{S_WB}, s42, {WB_OFF}"); I(f"s_addc_u32 s{S_WB+1}, s43, 0"); I(f"s_mov_b32 s{S_WB+2}, {WS_BYTES}"); I(f"s_mov_b32 s{S_WB+3}, 0x00020000")
C("hand-off words: chunk published <=> flag == base ^ KEY; base as found at entry (scalar path)")
I(f"s_lshl_b32 s{S_T0}, s{S_NI}, 7"); I(f"s_add_u32 s{S_T0}, s{S_T0}, {FB_OFF}")
I(f"s_add_u32 s82, s{S_WB}, s{S_T0}"); I(f"s_addc_u32 s83, s{S_WB+1}, 0")
I(f"s_load_dwordx16 s[{S_F}:{S_F+15}], s[82:83], 0")
I("v_and_b32 v29, 15, v2"); I(f"v_mul_u32_u24 v{VFA}, {FSTR}, v29")
I("v_lshlrev_b32 v29, 2, v29"); I(f"v_add_u32 v29, s{S_T0}, v29")
I(f"s_mul_i32 s{S_T0}, s{S_NI}, {FPAN}"); I(f"s_add_u32 s{S_T0}, s{S_T0}, {FL_OFF}"); I(f"v_add_u32 v{VFA}, s{S_T0}, v{VFA}")
I(f"s_lshl_b32 s{S_T0}, s{S_NI}, 4"); I(f"s_add_u32 s{S_T0}, s{S_T0}, s{S_CS}"); I(f"s_lshl_b32 s{S_SP}, s{S_T0}, 14")
I("v_lshlrev_b32 v24, 4, v2"); I(f"s_lshl_b32 s{S_T0}, s{S_NI}, 18"); I(f"v_add_u32 v24, s{S_T0}, v24")
g.srd(S_X, 4, M*K*2)
stamp_setup()
C("v8 = image offset in chunk: (2p+h)*2048 + (i&1)*1024 + (((i>>1)^(4*(i&1)))*16)  (+ c*256)")
I(f"s_lshl_b32 s{S_T0}, s{S_P}, 12")
I("v_lshlrev_b32 v8, 11, v4"); I(f"v_add_u32 v8, s{S_T0}, v8")
I("v_and_b32 v9, 1, v3"); I("v_lshl_add_u32 v8, v9, 10, v8"); I("v_lshlrev_b32 v9, 2, v9")
I("v_lshrrev_b32 v10, 1, v3"); I("v_xor_b32 v10, v10, v9"); I("v_lshl_add_u32 v8, v10, 4, v8")
I(f"v_add_u32 v9, s{S_STG}, v8")
C("A DMA offsets: (m0+64p+8j+(l>>3))*2048 + (((l&7)^((4(j&1)+(l>>4))&7))*16) - (j%4)*1024")
I(f"s_lshl_b32 s{S_T0}, s{S_P}, 6"); I(f"s_lshl_b32 s{S_T1}, s{S_MI}, 8"); I(f"s_add_u32 s{S_T0}, s{S_T0}, s{S_T1}"); I(f"s_lshl_b32 s{S_T0}, s{S_T0}, 11")
I("v_lshrrev_b32 v11, 3, v2"); I("v_lshlrev_b32 v11, 11, v11"); I(f"v_add_u32 v11, s{S_T0}, v11")
I("v_and_b32 v12, 7, v2"); I("v_lshrrev_b32 v13, 4, v2"); I("v_xor_b32 v12, v12, v13"); I("v_xor_b32 v13, 4, v12")
I("v_lshl_add_u32 v12, v12, 4, v11"); I("v_lshl_add_u32 v13, v13, 4, v11")
for j in range(8): I(f"v_add_u32 v{VOA+j}, {8*j*2048 - (j%4)*1024}, v{12 + (j&1)}")
I(f"s_lshl_b32 s{S_MA}, s{S_P}, 13")
I(f"s_lshl_b32 s{S_OA}, s{S_CS}, 7")
C("MFMA-wave addresses (cheap, computed by every wave while the loads fly)")
VA0 = 104; VA = 108; VOUT = 112
I("v_lshrrev_b32 v3, 4, v2"); I("v_and_b32 v4, 15, v2")
I("v_lshlrev_b32 v5, 7, v4"); I(f"v_add_u32 v5, s{S_MA}, v5"); I("v_bfe_u32 v6, v4, 1, 3")
for t in range(2):
    I(f"v_add_u32 v10, {4*t}, v3"); I("v_xor_b32 v10, v10, v6"); I(f"v_lshl_add_u32 v{VA0+t}, v10, 4, v5")
I("v_lshlrev_b32 v10, 11, v3"); I(f"v_add_u32 v10, {BOFF}, v10")
I(f"v_lshl_add_u32 v{VA0+2}, v4, 4, v10")
I("v_xor_b32 v11, 4, v4"); I(f"v_lshl_add_u32 v{VA0+3}, v11, 4, v10")
for t in range(4): I(f"v_mov_b32 v{VA+t}, v{VA0+t}")
I(f"s_lshl_b32 s{S_T0}, s{S_P}, 6"); I(f"s_lshl_b32 s{S_T1}, s{S_MI}, 8"); I(f"s_add_u32 s{S_T0}, s{S_T0}, s{S_T1}")
I(f"s_mul_i32 s{S_T0}, s{S_T0}, {N*2}"); I(f"s_lshl_b32 s{S_T1}, s{S_NI}, 8"); I(f"s_add_u32 s{S_T0}, s{S_T0}, s{S_T1}")
I(f"v_mul_u32_u24 v10, {4*N*2}, v3"); I("v_lshl_add_u32 v10, v4, 4, v10"); I(f"v_add_u32 v{VOUT}, s{S_T0}, v10")
g.srd(S_OUT, 14, M*N*2)
I("s_waitcnt lgkmcnt(0)")
I(f"v_mov_b32 v{VF0}, 0")
for l in range(16): I(f"v_writelane_b32 v{VF0}, s{S_F+l}, {l}")
I(f"v_xor_b32 v{VF0}, {FKEY:#x}, v{VF0}")
C("dequantise: w = bf16(((float)q*s - z*s) * a[k]), row pair by row pair as the loads land")
I("s_waitcnt vmcnt(8)")
for d in range(4):
    I(f"v_lshlrev_b32 v{VSC+2*d}, 16, v{VR+d}"); I(f"v_and_b32 v{VSC+2*d+1}, 0xffff0000, v{VR+d}")
for d in range(4):
    I(f"v_lshlrev_b32 v{VSC+8+2*d}, 16, v{VR+4+d}"); I(f"v_and_b32 v{VSC+9+2*d}, 0xffff0000, v{VR+4+d}")
for T in range(4): I(f"v_mul_f32 v{VSC+4+T}, -v{VSC+4+T}, v{VSC+T}")
for e in range(8):
    I(f"s_waitcnt vmcnt({7-e})")
    if e == 7 and opt["diag"]: keep(7)
    q = VQ + 4*e
    for c in range(4): I(f"v_cvt_f32_i32 v{q+c}, v{q+c}")
    for c in range(4): I(f"v_fma_f32 v{q+c}, v{q+c}, v{VSC+c}, v{VSC+4+c}")
    for c in range(4): I(f"v_mul_f32 v{q+c}, v{q+c}, v{VSC+8+e}")
    if e & 1:
        for c in range(4): I(f"v_cvt_pk_bf16_f32 v{VO+4*c+e//2}, v{q-4+c}, v{q+c}")
I(f"s_cmp_lt_u32 s{S_WV}, 4")
I("s_cbranch_scc1 L_cons")

for c in range(4): I(f"buffer_store_dwordx4 v[{VO+4*c}:{VO+4*c+3}], v8, s[{S_WB}:{S_WB+3}], s{S_SP} offen offset:{c*256} sc1")
keep(1)
ld_A()
for c in range(4): I(f"ds_write_b128 v9, v[{VO+4*c}:{VO+4*c+3}] offset:{BOFF + c*256}")
I(f"s_mov_b32 s{S_STG}, {STG}")
I("s_waitcnt vmcnt(0)")
keep(2)
I(f"v_mov_b32 v{VTMP}, 1")
I("s_mov_b64 exec, 1")
I(f"ds_add_rtn_u32 v{VTMP+1}, v{VCN}, v{VTMP}")
I("s_waitcnt lgkmcnt(0)")
I(f"v_readfirstlane_b32 s{S_T0}, v{VTMP+1}")
I(f"s_cmp_lg_u32 s{S_T0}, 3")
I("s_cbranch_scc1 L_nf0")
I(f"s_lshl_b32 s{S_T1}, 1, s{S_MI}")
I(f"s_mov_b32 exec_lo, s{S_T1}")
I(f"buffer_store_dword v{VF0}, v{VFA}, s[{S_WB}:{S_WB+3}], 0 offen sc1")
g.LBL("L_nf0")
I("s_mov_b64 exec, -1")
I("s_barrier")
I(f"s_mov_b32 s{S_U}, 2")
I(f"s_cmp_eq_u32 s{S_WV}, 4")
I("s_cbranch_scc1 L_bload")
C("waves 5-7: A shares; waves 5,6 also copy the L image (stage 1) out to ws, 8 KB each")
I(f"s_sub_u32 s{S_T0}, s{S_WV}, 5"); I(f"s_lshl_b32 s{S_T0}, s{S_T0}, 13")
I("v_lshlrev_b32 v25, 4, v2"); I(f"v_add_u32 v25, s{S_T0}, v25")
I(f"v_add_u32 v26, {STG + BOFF}, v25")
I(f"s_add_u32 s{S_SP}, s{S_SP}, {8*16384}"); I(f"s_add_u32 s81, s{S_SP}, 4096")
g.LBL("L_aloop")
I(f"s_cmp_lg_u32 s{S_U}, 5"); I("s_cbranch_scc1 L_a1")
I("s_waitcnt vmcnt(0)")
g.LBL("L_a1")
I(f"s_cmp_lg_u32 s{S_U}, 6"); I("s_cbranch_scc1 L_a2")
I(f"s_cmp_lg_u32 s{S_WV}, 5"); I("s_cbranch_scc1 L_a2")
I(f"s_lshl_b32 s{S_T1}, 256, s{S_MI}")
I(f"s_mov_b32 exec_lo, s{S_T1}"); I("s_mov_b32 exec_hi, 0")
I(f"buffer_store_dword v{VF0}, v{VFA}, s[{S_WB}:{S_WB+3}], 0 offen sc1")
I("s_mov_b64 exec, -1")
g.LBL("L_a2")
step_of_pos(); next_stage(); I(f"s_lshl_b32 s{S_OA}, s{S_CS}, 7"); ld_A()
I("s_waitcnt vmcnt(8)")
I(f"s_cmp_lg_u32 s{S_U}, 3"); I("s_cbranch_scc1 L_a3")
I(f"s_cmp_eq_u32 s{S_WV}, 7"); I("s_cbranch_scc1 L_a3")
for j in range(8): I(f"ds_read_b128 v[{128+4*j}:{131+4*j}], v26 offset:{j*1024}")
I("s_waitcnt lgkmcnt(0)")
I("s_barrier")
for j in range(8):
    I(f"buffer_store_dwordx4 v[{128+4*j}:{131+4*j}], v25, s[{S_WB}:{S_WB+3}], s{S_SP if j < 4 else 81} offen offset:{(j%4)*1024} sc1")
I("s_branch L_a4")
g.LBL("L_a3")
I("s_barrier")
g.LBL("L_a4")
I(f"s_add_u32 s{S_U}, s{S_U}, 1")
I(f"s_cmp_lt_u32 s{S_U}, 16")
I("s_cbranch_scc1 L_aloop")
I("s_waitcnt vmcnt(0)")
I("s_barrier")
flush_keeps([0, 1, 2])
I("s_endpgm")

g.LBL("L_bload")
C("wave 4: S_U next position to issue, S_PB last barrier passed, S_FL mask of published steps")
I(f"s_mov_b32 s{S_PB}, 0"); I(f"s_mov_b32 s{S_FL}, 0"); I(f"s_mov_b32 s{S_NP}, 0")
g.LBL("L_sm")
I(f"s_mov_b32 s{S_PEND}, 0")
I(f"s_cmp_ge_u32 s{S_U}, 16")
I("s_cbranch_scc1 L_trybar")
step_of_pos()
I(f"s_bitcmp1_b32 s{S_FL}, s{S_CS}")
I("s_cbranch_scc0 L_dopoll")
I(f"s_add_u32 s{S_T0}, s{S_PB}, 2")
I(f"s_cmp_gt_u32 s{S_U}, s{S_T0}")
I("s_cbranch_scc1 L_trybar")
if opt["stamps"]:
    I(f"s_cmp_lg_u32 s{S_U}, 2"); I("s_cbranch_scc1 L_ns1"); keep(5); g.LBL("L_ns1")
    I(f"s_cmp_lg_u32 s{S_U}, 8"); I("s_cbranch_scc1 L_ns2"); keep(6); g.LBL("L_ns2")
next_stage()
I(f"s_lshl_b32 s{S_OB}, s{S_CS}, 14"); I(f"s_lshl_b32 s{S_OA}, s{S_CS}, 7")
for jj in range(4):
    I(f"s_add_u32 m0, s{S_STG}, {BOFF + jj*4096}")
    if jj: I(f"s_add_u32 s{S_OB}, s{S_OB}, 4096")
    else: I("s_nop 0")
    for j in range(4): I(f"buffer_load_dwordx4 v24, s[{S_WB}:{S_WB+3}], s{S_OB} offen offset:{j*1024} lds")
ld_A()
I(f"s_add_u32 s{S_U}, s{S_U}, 1")
I("s_branch L_sm")
g.LBL("L_dopoll")
I("s_mov_b64 exec, 0xffff")
I(f"buffer_load_dword v28, v{VFA}, s[{S_WB}:{S_WB+3}], 0 offen sc1")
I(f"s_add_u32 s{S_NP}, s{S_NP}, 1")
I(f"s_mov_b32 s{S_PEND}, 1")
if opt["npoll"]:
    I(f"s_cmp_le_u32 s{S_NP}, {opt['npoll']}")
    I("s_cbranch_scc1 L_nobar")
g.LBL("L_trybar")
I(f"s_sub_u32 s{S_T0}, s{S_U}, s{S_PB}")
I(f"s_cmp_le_u32 s{S_T0}, 1")
I("s_cbranch_scc1 L_nobar")
I(f"s_lshl_b32 s{S_T0}, s{S_T0}, 1"); I(f"s_add_u32 s{S_T0}, s{S_T0}, s{S_PEND}")
I(f"s_cmp_eq_u32 s{S_T0}, 6"); I("s_cbranch_scc1 L_w24")
I(f"s_cmp_eq_u32 s{S_T0}, 7"); I("s_cbranch_scc1 L_w25")
I(f"s_cmp_eq_u32 s{S_T0}, 5"); I("s_cbranch_scc1 L_w1")
I("s_waitcnt vmcnt(0)")
g.LBL("L_w1")
I("s_waitcnt vmcnt(1)")
g.LBL("L_w24")
I("s_waitcnt vmcnt(24)")
g.LBL("L_w25")
I("s_waitcnt vmcnt(25)")
I("s_barrier")
I(f"s_add_u32 s{S_PB}, s{S_PB}, 1")
I(f"s_cmp_ge_u32 s{S_PB}, 15")
I("s_cbranch_scc1 L_bdone")
g.LBL("L_nobar")
I(f"s_cmp_eq_u32 s{S_PEND}, 0")
I("s_cbranch_scc1 L_sm")
I(f"s_cmp_lt_u32 s{S_NP}, 0x40000")
I("s_cbranch_scc1 L_waitpoll")
I(f"s_mov_b32 s{S_FL}, 0xffff")
g.LBL("L_waitpoll")
I("s_waitcnt vmcnt(0)")
I(f"v_cmp_eq_u32 vcc, v28, v{VF0}")
I(f"s_or_b32 s{S_FL}, s{S_FL}, vcc_lo")
I("s_mov_b64 exec, -1")
I("s_branch L_sm")
g.LBL("L_bdone")
C("every sharer has published, hence read the base words: re-arm this WG's two words (base := flag value)")
I(f"s_lshl_b32 s{S_T1}, 0x101, s{S_MI}")
I(f"s_mov_b32 exec_lo, s{S_T1}"); I("s_mov_b32 exec_hi, 0")
I(f"buffer_store_dword v{VF0}, v29, s[{S_WB}:{S_WB+3}], 0 offen sc1")
I("s_mov_b64 exec, -1")
if opt["stamps"]: I("s_waitcnt lgkmcnt(0)"); I(f"s_mov_b32 s98, s{S_NP}")
flush_keeps([0, 1, 2, 5, 6, 7], dmap=[(0,0,1),(1,0,0),(2,1,0),(3,2,0),(9,5,0),(10,1,1),(11,5,1)])
I("s_endpgm")

g.LBL("L_cons")
if opt["tm"] >= 0: I("s_mov_b32 s81, s100")
for c in range(4): I(f"ds_write_b128 v9, v[{VO+4*c}:{VO+4*c+3}] offset:{BOFF + c*256}")
keep(0)
ld_A()
ACC = 128
def acc(a, T): return ACC + (a * 8 + T) * 4
FS = [8, 56]
def fA(s, a): return FS[s] + 4 * a
def fB(s, T): return FS[s] + 16 + 4 * T
def rdA(s, a, t): I(f"ds_read_b128 v[{fA(s,a)}:{fA(s,a)+3}], v{VA+t} offset:{a*2048}")
def rdB(s, T, t): I(f"ds_read_b128 v[{fB(s,T)}:{fB(s,T)+3}], v{VA+2+(T>>2)} offset:{t*8192 + T*256}")
def mfma(s, a, T, first=False):
    if opt["mfma"]:
        d = acc(a, T)
        I(f"v_mfma_f32_16x16x32_bf16 v[{d}:{d+3}], v[{fA(s,a)}:{fA(s,a)+3}], v[{fB(s,T)}:{fB(s,T)+3}], " + ("0" if first else f"v[{d}:{d+3}]"))
MORD = []
for a in range(4):
    MORD += [(a, T) for T in (range(8) if a % 2 == 0 else range(7, -1, -1))]
def reads(s, t):
    return [lambda: rdA(s,0,t)] + [(lambda T: (lambda: rdB(s,T,t)))(T) for T in range(8)] + [(lambda a: (lambda: rdA(s,a,t)))(a) for a in range(1,4)]
BP = opt["barpos"]
def half0(first):
    I("s_waitcnt lgkmcnt(0)")
    rd = reads(1, 1)
    for idx, (a, T) in enumerate(MORD):
        mfma(0, a, T, first)
        if idx < len(rd): rd[idx]()
        if idx == 16: next_stage()
        if idx == 18: I(f"s_add_u32 s{S_U}, s{S_U}, 1")
        if idx == 20:
            for tt in range(4): I(f"v_add_u32 v{VA+tt}, s{S_STG}, v{VA0+tt}")
if opt["prio"]: I(f"s_setprio {opt['prio']}")
I(f"s_mov_b32 s{S_U}, 0"); I(f"s_mov_b32 s{S_STG}, 0")
I("s_waitcnt lgkmcnt(0)")
I("s_barrier")
keep(1)
if opt["stamps"]: I("s_memtime s[64:65]")
for r in reads(0, 0): r()
half0(True)
I("s_waitcnt vmcnt(0)")
I("s_branch L_chalf1")
g.LBL("L_cloop")
half0(False)
g.LBL("L_chalf1")
I("s_waitcnt lgkmcnt(0)")
rd = reads(0, 0)
for idx, (a, T) in enumerate(MORD):
    mfma(1, a, T)
    if idx == BP:
        I(f"s_cmp_ge_u32 s{S_U}, 16")
        I("s_cbranch_scc1 L_ctail")
        I("s_barrier")
        if opt["stamps"]:
            I(f"s_cmp_lg_u32 s{S_U}, 1"); I("s_cbranch_scc1 L_cs1"); keep(4); g.LBL("L_cs1")
            I(f"s_cmp_lg_u32 s{S_U}, 2"); I("s_cbranch_scc1 L_cs2"); keep(5); g.LBL("L_cs2")
            if not opt["diag"]: I(f"s_cmp_lg_u32 s{S_U}, 9"); I("s_cbranch_scc1 L_cs3"); keep(7); g.LBL("L_cs3")
    if idx > BP and idx - BP - 1 < len(rd): rd[idx-BP-1]()
I("s_branch L_cloop")
g.LBL("L_ctail")
def epi_ops(a):
    ops = []
    for r in range(4):
        d = 8 + 4 * ((a*4 + r) % 12)
        for p in range(4): ops.append(f"v_cvt_pk_bf16_f32 v{d+p}, v{acc(a,2*p)+r}, v{acc(a,2*p+1)+r}")
        ops.append(f"s_mov_b32 s{S_T0}, {(16*a+r)*N*2}")
        ops.append(f"buffer_store_dwordx4 v[{d}:{d+3}], v{VOUT}, s[{S_OUT}:{S_OUT+3}], s{S_T0} offen{OSTF}")
    return ops
pend = []; done_a = set()
for idx, (a, T) in enumerate(MORD):
    if idx <= BP: continue
    mfma(1, a, T)
    if opt["epi"]:
        for ap in range(3):
            if ap not in done_a and idx >= 8*ap + 7 + 8:
                pend += epi_ops(ap); done_a.add(ap)
        for o in pend[:3]: I(o)
        pend = pend[3:]
keep(2)
if opt["stamps"]: I("s_memtime s[60:61]")
for o in pend: I(o)
rest = [a for a in range(4) if a not in done_a]
for a in rest[:-1]:
    for o in epi_ops(a): I(o)
I("s_nop 7")
for o in epi_ops(rest[-1]): I(o)
if not opt["epi"]: pass
if opt["stamps"]:
    I("s_waitcnt vmcnt(0)"); keep(3); I("s_waitcnt lgkmcnt(0)")
    I("s_sub_u32 s96, s60, s64")
    if opt["tm"] >= 0:
        C("diagnostic build only: stretch the launch to mult * (event - start)")
        I(f"s_sub_u32 s82, s{kreg(opt['tm'])}, s81"); I(f"s_mul_i32 s82, s82, {opt['mult']}"); I("s_min_u32 s82, s82, 50000")
        g.LBL("L_spin")
        I("s_sleep 4"); I("s_memrealtime s[60:61]"); I("s_waitcnt lgkmcnt(0)")
        I("s_sub_u32 s83, s60, s81"); I("s_cmp_lt_u32 s83, s82"); I("s_cbranch_scc1 L_spin")
        I("s_endpgm")
    if opt["dbg"]:
        I(f"s_cmp_lg_u32 s{S_WV}, 0"); I("s_cbranch_scc1 L_end")
    flush_keeps([0, 1, 2, 3, 4, 5, 6, 7], dmap=[(4,1,0),(5,5,0),(6,7,0),(7,2,0),(8,3,0),(12,6,0),(13,5,1),(14,2,1),(15,6,1)])
I("s_endpgm")

g.LBL("L_help")
if opt["cpf"]:
    C("pull the kernel's code into this die's L2 (range-checked)")
    I("s_getpc_b64 s[56:57]")
    g.LBL("L_pc")
    I(f"s_sub_u32 s56, s56, L_pc-{KN}"); I("s_subb_u32 s57, s57, 0")
    I(f"s_mov_b32 s58, L_codeend-{KN}"); I("s_mov_b32 s59, 0x00020000")
    I("v_lshlrev_b32 v10, 7, v0")
    I("buffer_load_dword v9, v10, s[56:59], 0 offen")
I(f"s_sub_u32 s{S_SLOT}, s{S_SLOT}, 28")
C("pass 0: tile mi=4*(xcd&1)+hs, rows 64*(wave&3)+lane, line mi (waves 0-3) / 8+mi (waves 4-7)")
I(f"s_and_b32 s{S_MI}, s{S_XCD}, 1"); I(f"s_lshl_b32 s{S_MI}, s{S_MI}, 2"); I(f"s_add_u32 s{S_MI}, s{S_MI}, s{S_SLOT}")
I(f"s_lshl_b32 s{S_T0}, s{S_MI}, 8"); I(f"s_lshl_b32 s{S_T1}, s{S_P}, 6"); I(f"s_add_u32 s{S_T0}, s{S_T0}, s{S_T1}")
I(f"s_lshl_b32 s{S_T0}, s{S_T0}, 11")
I("v_lshlrev_b32 v5, 11, v2"); I(f"v_add_u32 v5, s{S_T0}, v5")
I(f"s_lshr_b32 s{S_T0}, s{S_WV}, 2"); I(f"s_lshl_b32 s{S_T0}, s{S_T0}, 3"); I(f"s_add_u32 s{S_T0}, s{S_T0}, s{S_MI}"); I(f"s_lshl_b32 s{S_OA}, s{S_T0}, 7")
C("passes 1,2: rows 1024*(xcd&1) + 256*(xcd>>1) + 64*hs + 8*wave + (l>>3), line (l&7), then +8")
I(f"s_and_b32 s{S_T0}, s{S_XCD}, 1"); I(f"s_lshl_b32 s{S_T0}, s{S_T0}, 10")
I(f"s_lshr_b32 s{S_T1}, s{S_XCD}, 1"); I(f"s_lshl_b32 s{S_T1}, s{S_T1}, 8"); I(f"s_add_u32 s{S_T0}, s{S_T0}, s{S_T1}")
I(f"s_lshl_b32 s{S_T1}, s{S_SLOT}, 6"); I(f"s_add_u32 s{S_T0}, s{S_T0}, s{S_T1}")
I(f"s_lshl_b32 s{S_T1}, s{S_WV}, 3"); I(f"s_add_u32 s{S_T0}, s{S_T0}, s{S_T1}")
I(f"s_lshl_b32 s{S_T0}, s{S_T0}, 11")
I("v_lshrrev_b32 v11, 3, v2"); I("v_lshlrev_b32 v11, 11, v11"); I("v_and_b32 v12, 7, v2"); I("v_lshl_add_u32 v11, v12, 7, v11")
I(f"v_add_u32 v11, s{S_T0}, v11")
I("s_waitcnt lgkmcnt(0)")
g.srd(S_X, 4, M*K*2)
stamp_setup()
if opt["hp0"]:
    I(f"buffer_load_dword v15, v5, s[{S_X}:{S_X+3}], s{S_OA} offen")
    if opt["hdel"]: I("s_waitcnt vmcnt(0)")
    keep(3)
    I("s_barrier")
else: keep(3)
I(f"buffer_load_dword v14, v11, s[{S_X}:{S_X+3}], 0 offen")
if opt["hdel"]: I("s_waitcnt vmcnt(0)"); keep(1)
I("s_barrier")
I(f"buffer_load_dword v13, v11, s[{S_X}:{S_X+3}], 0 offen offset:1024")
if opt["stamps"]:
    if not opt["hdel"]: I("s_waitcnt vmcnt(1)"); keep(1)
    I("s_waitcnt vmcnt(0)"); keep(2); flush_keeps([0, 1, 2, 3])
g.LBL("L_end")
I("s_endpgm")
g.LBL("L_codeend")

out = HEADER + f"""; Launch geometry (generated by my generator script gen15.py)
; @launch grid=({NWG},1,1) block=(512,1,1) lds={LDS_BYTES}
.amdgcn_target "amdgcn-amd-amdhsa--gfx950"
.text
""" + kernel_text(KN, g.text()) + """.section .rodata,"a"
""" + kd(KN, 256, 102)
open(sys.argv[1], "w").write(out)
print(LDS_BYTES, len(g.L))
```

```python
import sys
from asmlib import *
opt = dict(stamps=0, prio=1, barpos=8, ostf=3, cpf=1, hp0=1, hdel=1, npoll=1, epi=1, a0row=4, prepoll=0, hl2=0, loc=0, mord=0, pp=0, diag=0)
for a in sys.argv[2:]:
    k, v = a.split("="); assert k in opt, k; opt[k] = int(v)
g = Asm(); I = g.I; C = g.C
NWG = 256
STG = 49152; NSTG = 3; BOFF = 32768
CNT = STG * NSTG
LDS_BYTES = CNT + 64
WB_OFF = (1 << 20) if opt["stamps"] else 0
WB_BYTES = 28 * 16 * 16384
FB_OFF = WB_BYTES
FL_OFF = FB_OFF + 28 * 128
WS_BYTES = FL_OFF + 28 * 128
FKEY = 0x5ac3a53c
OSTF = {0: "", 1: " sc1", 2: " sc0 sc1", 3: " nt", 4: " sc1 nt"}[opt["ostf"]]
S_X, S_Q, S_S, S_Z, S_ACT, S_OUT, S_WB = 16, 20, 24, 28, 32, 36, 68
S_WV = 44; S_MI = 45; S_NI = 46; S_T0 = 47; S_T1 = 48; S_U = 49; S_T2 = 55
S_OB = 50; S_OA = 51; S_STG = 52; S_MA = 53; S_XCD = 54; S_SLOT = 63; S_P = 66; S_CS = 67; S_PB = 76; S_NP = 77; S_FL = 78; S_PEND = 79; S_SP = 80
S_F = 84
VQ = 56; VR = 88; VSC = 128; VO = 32; VOA = 16
VFA = 113; VF0 = 114; VCN = 115; VTMP = 116

def kreg(idx): return 100 if idx == 0 else 84 + 2*idx
def stamp_setup():
    if not opt["stamps"]: return
    g.srd(56, 42, 1 << 20)
    I("s_lshl_b32 s62, s2, 3"); I(f"s_add_u32 s62, s62, s{S_WV}"); I("s_lshl_b32 s62, s62, 6")
def keep(idx):
    if opt["stamps"]: I(f"s_memrealtime s[{kreg(idx)}:{kreg(idx)+1}]")
NK = [0]
def keep_if(reg, val, idx):
    if not opt["stamps"]: return
    NK[0] += 1
    I(f"s_cmp_lg_u32 s{reg}, {val}"); I(f"s_cbranch_scc1 L_k{NK[0]}"); keep(idx); g.LBL(f"L_k{NK[0]}")
def flush_keeps(idxs, vt=122):
    if not opt["stamps"]: return
    I("s_waitcnt lgkmcnt(0)")
    for idx in idxs:
        I(f"v_mov_b32 v{vt}, s{kreg(idx)}"); I(f"v_mov_b32 v{vt+1}, 0"); I(f"v_mov_b32 v{vt+2}, s62")
        I(f"buffer_store_dwordx2 v[{vt}:{vt+1}], v{vt+2}, s[56:59], 0 offen offset:{idx*8}")
def next_stage():
    I(f"s_add_u32 s{S_STG}, s{S_STG}, {STG}"); I(f"s_cmp_ge_u32 s{S_STG}, {STG*NSTG}"); I(f"s_cselect_b32 s{S_STG}, 0, s{S_STG}")
def ld_A(n=8):
    for j in range(n):
        if j % 4 == 0:
            if j == 0: I(f"s_add_u32 m0, s{S_STG}, s{S_MA}")
            else:      I("s_add_u32 m0, m0, 4096")
            if j == 8: I(f"s_add_u32 s{S_OA}, s{S_OA}, {64*2048}")
            else: I("s_nop 0")
        I(f"buffer_load_dwordx4 v{VOA+j%8}, s[{S_X}:{S_X+3}], s{S_OA} offen offset:{(j%4)*1024} lds")
def step_of_pos():
    I(f"s_add_u32 s{S_T0}, s{S_U}, s{S_MI}"); I(f"s_add_u32 s{S_CS}, s{S_T0}, 7"); I(f"s_and_b32 s{S_CS}, s{S_CS}, 7")
    I(f"s_and_b32 s{S_T0}, s{S_T0}, 7"); I(f"s_or_b32 s{S_T0}, s{S_T0}, 8")
    I(f"s_cmp_ge_u32 s{S_U}, 9")
    I(f"s_cselect_b32 s{S_CS}, s{S_T0}, s{S_CS}")
ND = [0]
def dual(lines):
    if not opt["loc"]:
        for l in lines: I(l + " sc1")
        return
    ND[0] += 1
    I(f"s_cmp_ge_u32 s{S_SLOT}, 24"); I(f"s_cbranch_scc1 L_dg{ND[0]}")
    for l in lines: I(l)
    I(f"s_branch L_dh{ND[0]}")
    g.LBL(f"L_dg{ND[0]}")
    for l in lines: I(l + " sc1")
    g.LBL(f"L_dh{ND[0]}")

keep(0)
I(f"s_cmp_ge_u32 s2, {NWG}")
I("s_cbranch_scc1 L_end")
I("s_load_dwordx4 s[4:7], s[0:1], 0")
I("s_load_dwordx4 s[8:11], s[0:1], 16")
I("s_load_dwordx4 s[12:15], s[0:1], 32")
I("s_load_dwordx2 s[42:43], s[0:1], 56")
I("v_lshrrev_b32 v1, 6, v0")
I("v_and_b32 v2, 63, v0")
I(f"s_and_b32 s{S_XCD}, s2, 7")
I(f"v_readfirstlane_b32 s{S_WV}, v1")
I(f"s_lshr_b32 s{S_SLOT}, s2, 3")
I("v_and_b32 v3, 31, v2"); I("v_lshrrev_b32 v4, 5, v2")
I(f"s_and_b32 s{S_P}, s{S_WV}, 3")
I(f"s_cmp_ge_u32 s{S_SLOT}, 28")
I("s_cbranch_scc1 L_help")
if not opt["loc"]:
    I(f"s_and_b32 s{S_MI}, s{S_XCD}, 1"); I(f"s_lshl_b32 s{S_MI}, s{S_MI}, 2")
    I(f"s_and_b32 s{S_T2}, s{S_SLOT}, 3"); I(f"s_add_u32 s{S_MI}, s{S_MI}, s{S_T2}")
    I(f"s_lshr_b32 s{S_NI}, s{S_XCD}, 1"); I(f"s_mul_i32 s{S_NI}, s{S_NI}, 7")
    I(f"s_lshr_b32 s{S_T2}, s{S_SLOT}, 2"); I(f"s_add_u32 s{S_NI}, s{S_NI}, s{S_T2}")
else:
    I(f"s_and_b32 s{S_T0}, s{S_XCD}, 1"); I(f"s_lshl_b32 s{S_T0}, s{S_T0}, 2")
    I(f"s_lshr_b32 s{S_NI}, s{S_XCD}, 1"); I(f"s_mul_i32 s{S_NI}, s{S_NI}, 7")
    I(f"s_lshr_b32 s{S_T1}, s{S_SLOT}, 3"); I(f"s_add_u32 s{S_T2}, s{S_T1}, s{S_T0}")
    I(f"s_and_b32 s{S_MI}, s{S_SLOT}, 7"); I(f"s_add_u32 s{S_T0}, s{S_T0}, s{S_MI}")
    I(f"s_cmp_ge_u32 s{S_SLOT}, 24")
    I(f"s_cselect_b32 s{S_T2}, 3, s{S_T2}"); I(f"s_cselect_b32 s{S_MI}, s{S_T0}, s{S_MI}")
    I(f"s_add_u32 s{S_NI}, s{S_NI}, s{S_T2}")
I(f"s_cmp_ge_u32 s{S_WV}, 4")
I(f"s_cselect_b32 s{S_CS}, 0, 8"); I(f"s_cselect_b32 s{S_STG}, 0, {STG}"); I(f"s_add_u32 s{S_CS}, s{S_CS}, s{S_MI}")
C("v5 = q offset (64*step+16p+8h)*14336 + ni*512 + 16i ; v6 = scale offset ; v7 = act offset")
I(f"s_lshl_b32 s{S_T2}, s{S_CS}, 2"); I(f"s_add_u32 s{S_T2}, s{S_T2}, s{S_P}")
I(f"s_mul_i32 s{S_T0}, s{S_T2}, {16*N*4}"); I(f"s_lshl_b32 s{S_T1}, s{S_NI}, 9"); I(f"s_add_u32 s{S_T0}, s{S_T0}, s{S_T1}")
I(f"v_mul_u32_u24 v5, {8*N*4}, v4"); I("v_lshl_add_u32 v5, v3, 4, v5"); I(f"v_add_u32 v5, s{S_T0}, v5")
I(f"s_lshr_b32 s{S_T0}, s{S_T2}, 1"); I(f"s_mul_i32 s{S_T0}, s{S_T0}, {N*2}"); I(f"s_lshl_b32 s{S_T1}, s{S_NI}, 8"); I(f"s_add_u32 s{S_T0}, s{S_T0}, s{S_T1}")
I("v_lshlrev_b32 v6, 3, v3"); I(f"v_add_u32 v6, s{S_T0}, v6")
I(f"s_lshl_b32 s{S_T0}, s{S_T2}, 5"); I("v_lshlrev_b32 v7, 4, v4"); I(f"v_add_u32 v7, s{S_T0}, v7")
I("v_mov_b32 v14, 0"); I(f"v_mov_b32 v{VCN}, {CNT}")
I(f"ds_write_b32 v{VCN}, v14")
I("s_waitcnt lgkmcnt(0)")
g.srd(S_S, 8, 32*N*2); g.srd(S_Z, 10, 32*N*2); g.srd(S_ACT, 12, K*2)
I(f"buffer_load_dwordx2 v[{VR}:{VR+1}], v6, s[{S_S}:{S_S+3}], 0 offen nt")
I(f"buffer_load_dwordx2 v[{VR+2}:{VR+3}], v6, s[{S_Z}:{S_Z+3}], 0 offen nt")
I(f"buffer_load_dwordx4 v[{VR+4}:{VR+7}], v7, s[{S_ACT}:{S_ACT+3}], 0 offen nt")
g.srd(S_Q, 6, K*N*4)
C("E waves queue their weight loads first")
I(f"s_cmp_ge_u32 s{S_WV}, 4"); I("s_cbranch_scc1 L_o1")
I("s_barrier")
g.LBL("L_o1")
for e in range(8):
    I(f"s_mov_b32 s{S_T0}, {e*N*4}")
    I(f"buffer_load_dwordx4 v[{VQ+4*e}:{VQ+4*e+3}], v5, s[{S_Q}:{S_Q+3}], s{S_T0} offen nt")
I(f"s_cmp_lt_u32 s{S_WV}, 4"); I("s_cbranch_scc1 L_o2")
I("s_barrier")
g.LBL("L_o2")
I(f"s_add_u32 s{S_WB}, s42, {WB_OFF}"); I(f"s_addc_u32 s{S_WB+1}, s43, 0"); I(f"s_mov_b32 s{S_WB+2}, {WS_BYTES}"); I(f"s_mov_b32 s{S_WB+3}, 0x00020000")
C("hand-off words: chunk published <=> flag == base ^ KEY; base as found at entry (scalar path)")
I(f"s_lshl_b32 s{S_T0}, s{S_NI}, 7"); I(f"s_add_u32 s{S_T0}, s{S_T0}, {FB_OFF}")
I(f"s_add_u32 s82, s{S_WB}, s{S_T0}"); I(f"s_addc_u32 s83, s{S_WB+1}, 0")
I(f"s_load_dwordx16 s[{S_F}:{S_F+15}], s[82:83], 0")
I("v_and_b32 v29, 15, v2"); I("v_lshlrev_b32 v29, 2, v29"); I(f"v_add_u32 v29, s{S_T0}, v29")
I(f"v_add_u32 v{VFA}, {FL_OFF - FB_OFF}, v29")
I(f"s_lshl_b32 s{S_T0}, s{S_NI}, 4"); I(f"s_add_u32 s{S_T0}, s{S_T0}, s{S_CS}"); I(f"s_lshl_b32 s{S_SP}, s{S_T0}, 14")
I("v_lshlrev_b32 v25, 4, v2"); I(f"s_lshl_b32 s{S_T0}, s{S_NI}, 18"); I(f"v_add_u32 v24, s{S_T0}, v25")
g.srd(S_X, 4, M*K*2)
stamp_setup()
C("v8 = image offset in chunk: (2p+h)*2048 + (i&1)*1024 + (((i>>1)^(4*(i&1)))*16)  (+ c*256)")
I(f"s_lshl_b32 s{S_T0}, s{S_P}, 12")
I("v_lshlrev_b32 v8, 11, v4"); I(f"v_add_u32 v8, s{S_T0}, v8")
I("v_and_b32 v9, 1, v3"); I("v_lshl_add_u32 v8, v9, 10, v8"); I("v_lshlrev_b32 v9, 2, v9")
I("v_lshrrev_b32 v10, 1, v3"); I("v_xor_b32 v10, v10, v9"); I("v_lshl_add_u32 v8, v10, 4, v8")
I(f"v_add_u32 v9, s{S_STG}, v8")
C("A DMA row block: MFMA wave w -> rows 64w.. ; waves 5,6 -> rows 128*(w-5)..")
I(f"s_sub_u32 s{S_T2}, s{S_WV}, 5"); I(f"s_lshl_b32 s{S_T2}, s{S_T2}, 1"); I(f"s_and_b32 s{S_T2}, s{S_T2}, 2")
I(f"s_cmp_lt_u32 s{S_WV}, 4"); I(f"s_cselect_b32 s{S_T2}, s{S_WV}, s{S_T2}")
C("offsets: (m0+64b+8j+(l>>3))*2048 + (((l&7)^((4(j&1)+(l>>4))&7))*16) - (j%4)*1024")
I(f"s_lshl_b32 s{S_T0}, s{S_T2}, 6"); I(f"s_lshl_b32 s{S_T1}, s{S_MI}, 8"); I(f"s_add_u32 s{S_T0}, s{S_T0}, s{S_T1}"); I(f"s_lshl_b32 s{S_T0}, s{S_T0}, 11")
I("v_lshrrev_b32 v11, 3, v2"); I("v_lshlrev_b32 v11, 11, v11"); I(f"v_add_u32 v11, s{S_T0}, v11")
I("v_and_b32 v12, 7, v2"); I("v_lshrrev_b32 v13, 4, v2"); I("v_xor_b32 v12, v12, v13"); I("v_xor_b32 v13, 4, v12")
I("v_lshl_add_u32 v12, v12, 4, v11"); I("v_lshl_add_u32 v13, v13, 4, v11")
for j in range(8): I(f"v_add_u32 v{VOA+j}, {8*j*2048 - (j%4)*1024}, v{12 + (j&1)}")
I(f"s_lshl_b32 s{S_MA}, s{S_T2}, 13")
C("MFMA-wave addresses (cheap, computed by every wave while the loads fly)")
VA0 = 104; VA = 108; VOUT = 112
I("v_lshrrev_b32 v3, 4, v2"); I("v_and_b32 v4, 15, v2")
I("v_lshlrev_b32 v5, 7, v4"); I(f"v_add_u32 v5, s{S_MA}, v5"); I("v_bfe_u32 v6, v4, 1, 3")
for t in range(2):
    I(f"v_add_u32 v10, {4*t}, v3"); I("v_xor_b32 v10, v10, v6"); I(f"v_lshl_add_u32 v{VA0+t}, v10, 4, v5")
I("v_lshlrev_b32 v10, 11, v3"); I(f"v_add_u32 v10, {BOFF}, v10")
I(f"v_lshl_add_u32 v{VA0+2}, v4, 4, v10")
I("v_xor_b32 v11, 4, v4"); I(f"v_lshl_add_u32 v{VA0+3}, v11, 4, v10")
for t in range(4): I(f"v_mov_b32 v{VA+t}, v{VA0+t}")
I(f"s_lshl_b32 s{S_T0}, s{S_P}, 6"); I(f"s_lshl_b32 s{S_T1}, s{S_MI}, 8"); I(f"s_add_u32 s{S_T0}, s{S_T0}, s{S_T1}")
I(f"s_mul_i32 s{S_T0}, s{S_T0}, {N*2}"); I(f"s_lshl_b32 s{S_T1}, s{S_NI}, 8"); I(f"s_add_u32 s{S_T0}, s{S_T0}, s{S_T1}")
I(f"v_mul_u32_u24 v10, {4*N*2}, v3"); I("v_lshl_add_u32 v10, v4, 4, v10"); I(f"v_add_u32 v{VOUT}, s{S_T0}, v10")
g.srd(S_OUT, 14, M*N*2)
I("s_waitcnt lgkmcnt(0)")
I(f"v_mov_b32 v{VF0}, 0")
for l in range(16): I(f"v_writelane_b32 v{VF0}, s{S_F+l}, {l}")
I(f"v_xor_b32 v{VF0}, {FKEY:#x}, v{VF0}")
C("dequantise: w = bf16(((float)q*s - z*s) * a[k]), row by row as the loads land")
I("s_waitcnt vmcnt(8)")
for d in range(4):
    I(f"v_lshlrev_b32 v{VSC+2*d}, 16, v{VR+d}"); I(f"v_and_b32 v{VSC+2*d+1}, 0xffff0000, v{VR+d}")
for d in range(4):
    I(f"v_lshlrev_b32 v{VSC+8+2*d}, 16, v{VR+4+d}"); I(f"v_and_b32 v{VSC+9+2*d}, 0xffff0000, v{VR+4+d}")
for T in range(4): I(f"v_mul_f32 v{VSC+4+T}, -v{VSC+4+T}, v{VSC+T}")
def conv_row(e, younger=0):
    I(f"s_waitcnt vmcnt({7-e+younger})")
    q = VQ + 4*e
    for c in range(4): I(f"v_cvt_f32_i32 v{q+c}, v{q+c}")
    for c in range(4): I(f"v_fma_f32 v{q+c}, v{q+c}, v{VSC+c}, v{VSC+4+c}")
    for c in range(4): I(f"v_mul_f32 v{q+c}, v{q+c}, v{VSC+8+e}")
    if e & 1:
        for c in range(4): I(f"v_cvt_pk_bf16_f32 v{VO+4*c+e//2}, v{q-4+c}, v{q+c}")
SPLIT = opt["a0row"]
for e in range(SPLIT): conv_row(e)
I(f"s_cmp_lt_u32 s{S_WV}, 4")
I("s_cbranch_scc1 L_cons")
for e in range(SPLIT, 8): conv_row(e)

dual([f"buffer_store_dwordx4 v[{VO+4*c}:{VO+4*c+3}], v8, s[{S_WB}:{S_WB+3}], s{S_SP} offen offset:{c*256}" for c in range(4)])
keep(1)
for c in range(4): I(f"ds_write_b128 v9, v[{VO+4*c}:{VO+4*c+3}] offset:{BOFF + c*256}")
I("s_waitcnt vmcnt(0)")
keep(2)
I(f"v_mov_b32 v{VTMP}, 1")
I("s_mov_b64 exec, 1")
I(f"ds_add_rtn_u32 v{VTMP+1}, v{VCN}, v{VTMP}")
I("s_waitcnt lgkmcnt(0)")
I(f"v_readfirstlane_b32 s{S_T0}, v{VTMP+1}")
I(f"s_cmp_lg_u32 s{S_T0}, 3")
I("s_cbranch_scc1 L_nf0")
I(f"s_lshl_b32 s{S_T1}, 1, s{S_MI}")
I(f"s_mov_b32 exec_lo, s{S_T1}")
dual([f"buffer_store_dword v{VF0}, v{VFA}, s[{S_WB}:{S_WB+3}], 0 offen"])
g.LBL("L_nf0")
I("s_mov_b64 exec, -1")
I(f"s_mov_b32 s{S_STG}, {STG}")
I(f"s_mov_b32 s{S_U}, 2")
I(f"s_cmp_eq_u32 s{S_WV}, 4")
I("s_cbranch_scc1 L_bload")
I("s_barrier")
I(f"s_cmp_eq_u32 s{S_WV}, 7")
I("s_cbranch_scc1 L_copy")
C("waves 5,6: A tiles")
g.LBL("L_aloop")
step_of_pos(); next_stage(); I(f"s_lshl_b32 s{S_OA}, s{S_CS}, 7"); ld_A(16)
keep_if(S_U, 3, 3)
if opt["diag"]:
    I(f"s_cmp_lg_u32 s{S_U}, 2"); I("s_cbranch_scc1 L_dg_a"); keep(5); I("s_waitcnt vmcnt(0)"); keep(6); g.LBL("L_dg_a")
I("s_waitcnt vmcnt(16)")
keep_if(S_U, 3, 4)
I("s_barrier")
I(f"s_add_u32 s{S_U}, s{S_U}, 1")
I(f"s_cmp_lt_u32 s{S_U}, 16")
I("s_cbranch_scc1 L_aloop")
I("s_waitcnt vmcnt(0)")
I("s_barrier")
flush_keeps([0, 1, 2, 3, 4, 5, 6])
I("s_endpgm")

g.LBL("L_copy")
C("wave 7: copy the L image (stage 1, complete at B_0) out to ws, publish it, then only attend the barriers")
I(f"v_add_u32 v26, {STG + BOFF}, v25")
I(f"s_add_u32 s{S_SP}, s{S_SP}, {8*16384}")
for j in range(16): I(f"ds_read_b128 v[{128+4*j}:{131+4*j}], v26 offset:{j*1024}")
I("s_waitcnt lgkmcnt(0)")
I("s_barrier")
I("s_barrier")
for jj in range(4):
    dual([f"buffer_store_dwordx4 v[{128+16*jj+4*j}:{131+16*jj+4*j}], v25, s[{S_WB}:{S_WB+3}], s{S_SP} offen offset:{j*1024}" for j in range(4)])
    I(f"s_add_u32 s{S_SP}, s{S_SP}, 4096")
    if jj == 1: I("s_barrier")
I("s_barrier")
I("s_waitcnt vmcnt(0)")
I(f"s_lshl_b32 s{S_T1}, 256, s{S_MI}")
I(f"s_mov_b32 exec_lo, s{S_T1}"); I("s_mov_b32 exec_hi, 0")
dual([f"buffer_store_dword v{VF0}, v{VFA}, s[{S_WB}:{S_WB+3}], 0 offen"])
I("s_mov_b64 exec, -1")
keep(3); keep(4)
flush_keeps([0, 1, 2])
I("s_endpgm")

g.LBL("L_bload")
C("wave 4: S_U next position to issue, S_PB last barrier passed, S_FL mask of published steps")
I(f"s_mov_b32 s{S_PB}, 0"); I(f"s_mov_b32 s{S_FL}, 0"); I(f"s_mov_b32 s{S_NP}, 0")
if opt["prepoll"]:
    I("s_mov_b64 exec, 0xffff")
    I(f"buffer_load_dword v28, v{VFA}, s[{S_WB}:{S_WB+3}], 0 offen sc1")
    I("s_barrier")
    I("s_branch L_waitpoll")
else:
    I("s_barrier")
g.LBL("L_sm")
I(f"s_mov_b32 s{S_PEND}, 0")
I(f"s_cmp_ge_u32 s{S_U}, 16")
I("s_cbranch_scc1 L_trybar")
step_of_pos()
I(f"s_bitcmp1_b32 s{S_FL}, s{S_CS}")
I("s_cbranch_scc0 L_dopoll")
I(f"s_add_u32 s{S_T0}, s{S_PB}, 2")
I(f"s_cmp_gt_u32 s{S_U}, s{S_T0}")
I("s_cbranch_scc1 L_trybar")
keep_if(S_U, 2, 5)
if not opt["diag"]: keep_if(S_U, 8, 6)
next_stage()
I(f"s_lshl_b32 s{S_OB}, s{S_CS}, 14")
for jj in range(4):
    I(f"s_add_u32 m0, s{S_STG}, {BOFF + jj*4096}")
    if jj: I(f"s_add_u32 s{S_OB}, s{S_OB}, 4096")
    else: I("s_nop 0")
    for j in range(4): I(f"buffer_load_dwordx4 v24, s[{S_WB}:{S_WB+3}], s{S_OB} offen offset:{j*1024} lds")
if opt["diag"]:
    I(f"s_cmp_lg_u32 s{S_U}, 2"); I("s_cbranch_scc1 L_dg_b"); I("s_waitcnt vmcnt(0)"); keep(6); g.LBL("L_dg_b")
I(f"s_add_u32 s{S_U}, s{S_U}, 1")
I("s_branch L_sm")
g.LBL("L_dopoll")
I("s_mov_b64 exec, 0xffff")
I(f"buffer_load_dword v28, v{VFA}, s[{S_WB}:{S_WB+3}], 0 offen sc1")
I(f"s_add_u32 s{S_NP}, s{S_NP}, 1")
I(f"s_mov_b32 s{S_PEND}, 1")
if opt["npoll"]:
    I(f"s_cmp_le_u32 s{S_NP}, {opt['npoll']}")
    I("s_cbranch_scc1 L_nobar")
g.LBL("L_trybar")
I(f"s_sub_u32 s{S_T0}, s{S_U}, s{S_PB}")
I(f"s_cmp_le_u32 s{S_T0}, 1")
I("s_cbranch_scc1 L_nobar")
keep_if(S_PB, 1, 3)
I(f"s_lshl_b32 s{S_T0}, s{S_T0}, 1"); I(f"s_add_u32 s{S_T0}, s{S_T0}, s{S_PEND}")
I(f"s_cmp_eq_u32 s{S_T0}, 6"); I("s_cbranch_scc1 L_w16")
I(f"s_cmp_eq_u32 s{S_T0}, 7"); I("s_cbranch_scc1 L_w17")
I(f"s_cmp_eq_u32 s{S_T0}, 5"); I("s_cbranch_scc1 L_w1")
I("s_waitcnt vmcnt(0)")
g.LBL("L_w1")
I("s_waitcnt vmcnt(1)")
g.LBL("L_w16")
I("s_waitcnt vmcnt(16)")
g.LBL("L_w17")
I("s_waitcnt vmcnt(17)")
keep_if(S_PB, 1, 4)
I("s_barrier")
I(f"s_add_u32 s{S_PB}, s{S_PB}, 1")
I(f"s_cmp_ge_u32 s{S_PB}, 15")
I("s_cbranch_scc1 L_bdone")
g.LBL("L_nobar")
I(f"s_cmp_eq_u32 s{S_PEND}, 0")
I("s_cbranch_scc1 L_sm")
I(f"s_cmp_lt_u32 s{S_NP}, 0x40000")
I("s_cbranch_scc1 L_waitpoll")
I(f"s_mov_b32 s{S_FL}, 0xffff")
g.LBL("L_waitpoll")
I("s_waitcnt vmcnt(0)")
if opt["diag"]: keep_if(S_NP, 1, 1)
I(f"v_cmp_eq_u32 vcc, v28, v{VF0}")
I(f"s_or_b32 s{S_FL}, s{S_FL}, vcc_lo")
I("s_mov_b64 exec, -1")
I("s_branch L_sm")
g.LBL("L_bdone")
C("every sharer has published, hence read the base words: re-arm this WG's two words (base := flag value)")
I(f"s_lshl_b32 s{S_T1}, 0x101, s{S_MI}")
I(f"s_mov_b32 exec_lo, s{S_T1}"); I("s_mov_b32 exec_hi, 0")
I(f"buffer_store_dword v{VF0}, v29, s[{S_WB}:{S_WB+3}], 0 offen sc1")
I("s_mov_b64 exec, -1")
if opt["stamps"]: I("s_waitcnt lgkmcnt(0)"); I(f"s_mov_b32 s98, s{S_NP}")
flush_keeps([0, 1, 2, 3, 4, 5, 6, 7])
I("s_endpgm")

g.LBL("L_cons")
I(f"s_mov_b32 s{S_STG}, 0"); I(f"s_lshl_b32 s{S_OA}, s{S_MI}, 7")
ld_A()
I(f"s_mov_b32 s{S_STG}, {STG}"); I(f"s_lshl_b32 s{S_OA}, s{S_CS}, 7")
for e in range(SPLIT, 8): conv_row(e, 8)
for c in range(4): I(f"ds_write_b128 v9, v[{VO+4*c}:{VO+4*c+3}] offset:{BOFF + c*256}")
keep(0)
ld_A()
ACC = 128
def acc(a, T): return ACC + (a * 8 + T) * 4
FS = [8, 56]
def fA(s, a): return FS[s] + 4 * a
def fB(s, T): return FS[s] + 16 + 4 * T
def rdA(s, a, t): I(f"ds_read_b128 v[{fA(s,a)}:{fA(s,a)+3}], v{VA+t} offset:{a*2048}")
def rdB(s, T, t): I(f"ds_read_b128 v[{fB(s,T)}:{fB(s,T)+3}], v{VA+2+(T>>2)} offset:{t*8192 + T*256}")
def mfma(s, a, T, first=False):
    d = acc(a, T)
    I(f"v_mfma_f32_16x16x32_bf16 v[{d}:{d+3}], v[{fA(s,a)}:{fA(s,a)+3}], v[{fB(s,T)}:{fB(s,T)+3}], " + ("0" if first else f"v[{d}:{d+3}]"))
MORD = []
for a in range(4): MORD += [(a, T) for T in (range(8) if a % 2 == 0 else range(7, -1, -1))]
def reads(s, t):
    return [lambda: rdA(s,0,t)] + [(lambda T: (lambda: rdB(s,T,t)))(T) for T in range(8)] + [(lambda a: (lambda: rdA(s,a,t)))(a) for a in range(1,4)]
BP = opt["barpos"]
def half0(first):
    I("s_waitcnt lgkmcnt(0)")
    rd = reads(1, 1)
    for idx, (a, T) in enumerate(MORD):
        mfma(0, a, T, first)
        if idx < len(rd): rd[idx]()
        if idx == 16: next_stage()
        if idx == 18: I(f"s_add_u32 s{S_U}, s{S_U}, 1")
        if idx == 20:
            for tt in range(4): I(f"v_add_u32 v{VA+tt}, s{S_STG}, v{VA0+tt}")
if opt["prio"]: I(f"s_setprio {opt['prio']}")
I(f"s_mov_b32 s{S_U}, 0"); I(f"s_mov_b32 s{S_STG}, 0")
I("s_waitcnt vmcnt(8) lgkmcnt(0)")
I("s_barrier")
keep(1)
if opt["stamps"]: I("s_memtime s[64:65]")
for r in reads(0, 0): r()
half0(True)
I("s_waitcnt vmcnt(0)")
I("s_branch L_chalf1")
g.LBL("L_cloop")
half0(False)
g.LBL("L_chalf1")
I("s_waitcnt lgkmcnt(0)")
rd = reads(0, 0)
for idx, (a, T) in enumerate(MORD):
    mfma(1, a, T)
    if idx == BP:
        I(f"s_cmp_ge_u32 s{S_U}, 16")
        I("s_cbranch_scc1 L_ctail")
        I("s_barrier")
        keep_if(S_U, 1, 4); keep_if(S_U, 2, 5); keep_if(S_U, 9, 7)
    if idx > BP and idx - BP - 1 < len(rd): rd[idx-BP-1]()
I("s_branch L_cloop")
g.LBL("L_ctail")
def epi_ops(a):
    ops = []
    for r in range(4):
        d = 8 + 4 * ((a*4 + r) % 12)
        for p in range(4): ops.append(f"v_cvt_pk_bf16_f32 v{d+p}, v{acc(a,2*p)+r}, v{acc(a,2*p+1)+r}")
        ops.append(f"s_mov_b32 s{S_T0}, {(16*a+r)*N*2}")
        ops.append(f"buffer_store_dwordx4 v[{d}:{d+3}], v{VOUT}, s[{S_OUT}:{S_OUT+3}], s{S_T0} offen{OSTF}")
    return ops
pend = []; done_a = set()
for idx, (a, T) in enumerate(MORD):
    if idx <= BP: continue
    mfma(1, a, T)
    if opt["epi"]:
        for ap in range(3):
            if ap not in done_a and idx >= 8*ap + 7 + 8:
                pend += epi_ops(ap); done_a.add(ap)
        for o in pend[:3]: I(o)
        pend = pend[3:]
keep(2)
if opt["stamps"]: I("s_memtime s[60:61]")
for o in pend: I(o)
rest = [a for a in range(4) if a not in done_a]
for a in rest[:-1]:
    for o in epi_ops(a): I(o)
I("s_nop 7")
for o in epi_ops(rest[-1]): I(o)
if opt["stamps"]:
    I("s_waitcnt vmcnt(0)"); keep(3); I("s_waitcnt lgkmcnt(0)")
    I("s_sub_u32 s96, s60, s64")
    flush_keeps([0, 1, 2, 3, 4, 5, 6, 7])
I("s_endpgm")

g.LBL("L_help")
if opt["cpf"]:
    C("pull the kernel's code into this die's L2 (range-checked)")
    I("s_getpc_b64 s[56:57]")
    g.LBL("L_pc")
    I(f"s_sub_u32 s56, s56, L_pc-{KN}"); I("s_subb_u32 s57, s57, 0")
    I(f"s_mov_b32 s58, L_codeend-{KN}"); I("s_mov_b32 s59, 0x00020000")
    I("v_lshlrev_b32 v10, 7, v0")
    I("buffer_load_dword v9, v10, s[56:59], 0 offen")
I(f"s_sub_u32 s{S_SLOT}, s{S_SLOT}, 28")
C("pass 0: tile mi=4*(xcd&1)+hs, rows 64*(wave&3)+lane, line mi (waves 0-3) / 8+mi (waves 4-7)")
I(f"s_and_b32 s{S_MI}, s{S_XCD}, 1"); I(f"s_lshl_b32 s{S_MI}, s{S_MI}, 2"); I(f"s_add_u32 s{S_MI}, s{S_MI}, s{S_SLOT}")
I(f"s_lshl_b32 s{S_T0}, s{S_MI}, 8"); I(f"s_lshl_b32 s{S_T1}, s{S_P}, 6"); I(f"s_add_u32 s{S_T0}, s{S_T0}, s{S_T1}")
I(f"s_lshl_b32 s{S_T0}, s{S_T0}, 11")
I("v_lshlrev_b32 v5, 11, v2"); I(f"v_add_u32 v5, s{S_T0}, v5")
I(f"s_lshr_b32 s{S_T0}, s{S_WV}, 2"); I(f"s_lshl_b32 s{S_T0}, s{S_T0}, 3"); I(f"s_add_u32 s{S_T0}, s{S_T0}, s{S_MI}"); I(f"s_lshl_b32 s{S_OA}, s{S_T0}, 7")
C("passes 1,2: rows 1024*(xcd&1) + 256*(xcd>>1) + 64*hs + 8*wave + (l>>3), line (l&7), then +8")
I(f"s_and_b32 s{S_T0}, s{S_XCD}, 1"); I(f"s_lshl_b32 s{S_T0}, s{S_T0}, 10")
I(f"s_lshr_b32 s{S_T1}, s{S_XCD}, 1"); I(f"s_lshl_b32 s{S_T1}, s{S_T1}, 8"); I(f"s_add_u32 s{S_T0}, s{S_T0}, s{S_T1}")
I(f"s_lshl_b32 s{S_T1}, s{S_SLOT}, 6"); I(f"s_add_u32 s{S_T0}, s{S_T0}, s{S_T1}")
I(f"s_lshl_b32 s{S_T1}, s{S_WV}, 3"); I(f"s_add_u32 s{S_T0}, s{S_T0}, s{S_T1}")
I(f"s_lshl_b32 s{S_T0}, s{S_T0}, 11")
I("v_lshrrev_b32 v11, 3, v2"); I("v_lshlrev_b32 v11, 11, v11"); I("v_and_b32 v12, 7, v2"); I("v_lshl_add_u32 v11, v12, 7, v11")
I(f"v_add_u32 v11, s{S_T0}, v11")
I("s_waitcnt lgkmcnt(0)")
g.srd(S_X, 4, M*K*2)
stamp_setup()
if opt["hp0"]:
    I(f"buffer_load_dword v15, v5, s[{S_X}:{S_X+3}], s{S_OA} offen")
    if opt["hdel"]: I("s_waitcnt vmcnt(0)")
    keep(3)
    I("s_barrier")
else: keep(3)
I(f"buffer_load_dword v14, v11, s[{S_X}:{S_X+3}], 0 offen")
if opt["hdel"]: I("s_waitcnt vmcnt(0)"); keep(1)
I("s_barrier")
I(f"buffer_load_dword v13, v11, s[{S_X}:{S_X+3}], 0 offen offset:1024")
if opt["hl2"]:
    C("then pull this helper's tile into the die's L2 in consumption order, two positions per round")
    I(f"s_lshr_b32 s{S_U}, s{S_WV}, 2"); I(f"s_add_u32 s{S_U}, s{S_U}, {opt['hl2']}")
    g.LBL("L_hl2")
    step_of_pos(); I(f"s_lshl_b32 s{S_OA}, s{S_CS}, 7")
    I("s_waitcnt vmcnt(0)")
    I(f"buffer_load_dword v15, v5, s[{S_X}:{S_X+3}], s{S_OA} offen")
    I(f"s_add_u32 s{S_U}, s{S_U}, 2"); I(f"s_cmp_lt_u32 s{S_U}, 16"); I("s_cbranch_scc1 L_hl2")
if opt["stamps"]:
    if not opt["hdel"]: I("s_waitcnt vmcnt(1)"); keep(1)
    I("s_waitcnt vmcnt(0)"); keep(2); flush_keeps([0, 1, 2, 3])
g.LBL("L_end")
I("s_endpgm")
g.LBL("L_codeend")

out = HEADER + f"""; Launch geometry (generated by my generator script gen19.py)
; @launch grid=({NWG},1,1) block=(512,1,1) lds={LDS_BYTES}
.amdgcn_target "amdgcn-amd-amdhsa--gfx950"
.text
""" + kernel_text(KN, g.text()) + """.section .rodata,"a"
""" + kd(KN, 256, 102)
open(sys.argv[1], "w").write(out)
print(LDS_BYTES, len(g.L))
```

```python
import sys
from asmlib import *
opt = dict(mfma=1, deq=1, stamps=0, prio=1, dsr=1, store=1, barpos=8, ntsteps=0, hstart=2, helpers=1, hsmem=1, hfirst=0)
for a in sys.argv[2:]:
    k, v = a.split("="); opt[k] = int(v)
g = Asm(); I = g.I; C = g.C
NMAIN = 224; NWG = 256 if opt["helpers"] else 224
ASTG = 32768; NA = 3
BBASE = NA * ASTG; BBUF = 16384
SBASE = BBASE + 2 * BBUF
ZBASE = SBASE + 8192
TBASE = ZBASE + 8192
LDS_BYTES = TBASE + 4096
S_X, S_Q, S_S, S_Z, S_ACT, S_OUT = 16, 20, 24, 28, 32, 36
S_WV = 44; S_MI = 45; S_NI = 46; S_T0 = 47; S_T1 = 48; S_U = 49; S_T2 = 55
S_OFFB = 50; S_OFFA = 51; S_STG = 52; S_MBASE = 53; S_XCD = 54; S_SLOT = 63

def stamp_setup():
    if not opt["stamps"]: return
    g.srd(56, 40, 1 << 20)
    I("s_lshl_b32 s62, s2, 3"); I(f"s_add_u32 s62, s62, s{S_WV}"); I("s_lshl_b32 s62, s62, 6")
def stamp(idx, vt=120, take=True):
    if not opt["stamps"]: return
    if take:
        I("s_memrealtime s[60:61]"); I("s_memtime s[64:65]"); I("s_waitcnt lgkmcnt(0)")
    I(f"v_mov_b32 v{vt}, s60"); I(f"v_mov_b32 v{vt+1}, s64"); I(f"v_mov_b32 v{vt+2}, s62")
    I(f"buffer_store_dwordx2 v[{vt}:{vt+1}], v{vt+2}, s[56:59], 0 offen offset:{idx*8}")

if opt["stamps"]: I("s_memrealtime s[60:61]"); I("s_memtime s[64:65]")
I(f"s_cmp_ge_u32 s2, {NWG}")
I("s_cbranch_scc1 L_end")
I("s_load_dwordx4 s[4:7], s[0:1], 0")
I("s_load_dwordx4 s[8:11], s[0:1], 16")
I("s_load_dwordx4 s[12:15], s[0:1], 32")
if opt["stamps"]: I("s_load_dwordx2 s[40:41], s[0:1], 56")
I("v_lshrrev_b32 v1, 6, v0")
I("v_and_b32 v2, 63, v0")
I(f"s_and_b32 s{S_XCD}, s2, 7")
I(f"v_readfirstlane_b32 s{S_WV}, v1")
I(f"s_lshr_b32 s{S_SLOT}, s2, 3")
if opt["helpers"]:
    if opt["hfirst"]:
        I(f"s_add_u32 s{S_SLOT}, s{S_SLOT}, 28"); I(f"s_and_b32 s{S_SLOT}, s{S_SLOT}, 31")
    I(f"s_cmp_ge_u32 s{S_SLOT}, 28")
    I("s_cbranch_scc1 L_help")
I(f"s_and_b32 s{S_MI}, s{S_XCD}, 1"); I(f"s_lshl_b32 s{S_MI}, s{S_MI}, 2")
I(f"s_and_b32 s{S_T2}, s{S_SLOT}, 3"); I(f"s_add_u32 s{S_MI}, s{S_MI}, s{S_T2}")
I(f"s_lshr_b32 s{S_NI}, s{S_XCD}, 1"); I(f"s_mul_i32 s{S_NI}, s{S_NI}, 7")
I(f"s_lshr_b32 s{S_T2}, s{S_SLOT}, 2"); I(f"s_add_u32 s{S_NI}, s{S_NI}, s{S_T2}")
I(f"s_cmp_ge_u32 s{S_WV}, 4")
I("s_cbranch_scc1 L_prod")

ACC = 128
def acc(a, T): return ACC + (a * 8 + T) * 4
FS = [8, 56]
def fA(s, a): return FS[s] + 4 * a
def fB(s, T): return FS[s] + 16 + 4 * T
VA0 = 104; VA = 106; VB = 108; VOUT = 110
C("table loads: scales/zeros rows 8w..8w+7 by LDS-DMA, act 256 values per wave")
I("v_lshrrev_b32 v3, 4, v2"); I("v_and_b32 v4, 15, v2")
I(f"v_mul_u32_u24 v5, {N*2}, v3"); I("v_lshl_add_u32 v5, v4, 4, v5")
I(f"s_mul_i32 s{S_T0}, s{S_WV}, {8*N*2}"); I(f"s_lshl_b32 s{S_T1}, s{S_NI}, 8"); I(f"s_add_u32 s{S_T0}, s{S_T0}, s{S_T1}")
I(f"v_add_u32 v5, s{S_T0}, v5")
I(f"v_add_u32 v6, {4*N*2 - 1024}, v5")
I(f"s_lshl_b32 s{S_T1}, s{S_WV}, 9"); I("v_lshlrev_b32 v7, 3, v2"); I(f"v_add_u32 v7, s{S_T1}, v7")
I(f"s_lshl_b32 s{S_T1}, s{S_WV}, 11")
I(f"s_add_u32 m0, s{S_T1}, {SBASE}")
I("s_waitcnt lgkmcnt(0)")
g.srd(S_ACT, 12, K*2); g.srd(S_S, 8, 32*N*2); g.srd(S_Z, 10, 32*N*2)
I(f"buffer_load_dwordx2 v[8:9], v7, s[{S_ACT}:{S_ACT+3}], 0 offen")
I(f"buffer_load_dwordx4 v5, s[{S_S}:{S_S+3}], 0 offen lds")
I(f"buffer_load_dwordx4 v6, s[{S_S}:{S_S+3}], 0 offen offset:1024 lds")
I(f"s_add_u32 m0, s{S_T1}, {ZBASE}"); I("s_nop 0")
I(f"buffer_load_dwordx4 v5, s[{S_Z}:{S_Z+3}], 0 offen lds")
I(f"buffer_load_dwordx4 v6, s[{S_Z}:{S_Z+3}], 0 offen offset:1024 lds")
g.srd(S_OUT, 14, M*N*2)
stamp_setup(); stamp(0, take=False)
if opt["prio"]: I(f"s_setprio {opt['prio']}")
C("A read addresses: (64w+i)*128 + ((4t+g)^((i>>1)&7))*16")
I(f"s_lshl_b32 s{S_T0}, s{S_WV}, 13")
I("v_lshlrev_b32 v5, 7, v4"); I(f"v_add_u32 v5, s{S_T0}, v5"); I("v_bfe_u32 v6, v4, 1, 3")
for t in range(2):
    I(f"v_add_u32 v10, {4*t}, v3"); I("v_xor_b32 v10, v10, v6"); I(f"v_lshl_add_u32 v{VA0+t}, v10, 4, v5")
    I(f"v_mov_b32 v{VA+t}, v{VA0+t}")
C("B read addresses: BBASE + g*2048 + j*16 (tiles 0-3), j^4 (tiles 4-7)")
I("v_lshlrev_b32 v10, 11, v3"); I(f"v_add_u32 v10, {BBASE}, v10")
I(f"v_lshl_add_u32 v{VB}, v4, 4, v10")
I("v_xor_b32 v11, 4, v4"); I(f"v_lshl_add_u32 v{VB+1}, v11, 4, v10")
C("output offset: ((m0+64w+4g)*N + n0 + 8j)*2")
I(f"s_lshl_b32 s{S_T0}, s{S_WV}, 6"); I(f"s_lshl_b32 s{S_T1}, s{S_MI}, 8"); I(f"s_add_u32 s{S_T0}, s{S_T0}, s{S_T1}")
I(f"s_mul_i32 s{S_T0}, s{S_T0}, {N*2}"); I(f"s_lshl_b32 s{S_T1}, s{S_NI}, 8"); I(f"s_add_u32 s{S_T0}, s{S_T0}, s{S_T1}")
I(f"v_mul_u32_u24 v10, {4*N*2}, v3"); I("v_lshl_add_u32 v10, v4, 4, v10"); I(f"v_add_u32 v{VOUT}, s{S_T0}, v10")
for r in range(128): I(f"v_mov_b32 v{ACC+r}, 0")
I(f"v_lshlrev_b32 v7, 1, v7"); I(f"v_add_u32 v7, {TBASE}, v7")
I("s_waitcnt vmcnt(0)")
I("v_lshlrev_b32 v12, 16, v8"); I("v_and_b32 v13, 0xffff0000, v8"); I("v_lshlrev_b32 v14, 16, v9"); I("v_and_b32 v15, 0xffff0000, v9")
I("ds_write_b128 v7, v[12:15]")
I("s_waitcnt lgkmcnt(0)")
I("s_barrier")
def rdA(s, a, t):
    if opt["dsr"]: I(f"ds_read_b128 v[{fA(s,a)}:{fA(s,a)+3}], v{VA+t} offset:{a*2048}")
def rdB(s, T, t, par):
    if opt["dsr"]: I(f"ds_read_b128 v[{fB(s,T)}:{fB(s,T)+3}], v{VB+(T>>2)} offset:{par*BBUF + t*8192 + T*256}")
def mfma(s, a, T):
    if opt["mfma"]:
        d = acc(a, T)
        I(f"v_mfma_f32_16x16x32_bf16 v[{d}:{d+3}], v[{fA(s,a)}:{fA(s,a)+3}], v[{fB(s,T)}:{fB(s,T)+3}], v[{d}:{d+3}]")
MORD = []
for a in range(4):
    MORD += [(a, T) for T in (range(8) if a % 2 == 0 else range(7, -1, -1))]
def reads(s, t, par):
    return [lambda: rdA(s,0,t)] + [(lambda T: (lambda: rdB(s,T,t,par)))(T) for T in range(8)] + [(lambda a: (lambda: rdA(s,a,t)))(a) for a in range(1,4)]
BP = opt["barpos"]
I(f"s_mov_b32 s{S_U}, 0"); I(f"s_mov_b32 s{S_STG}, 0")
I("s_barrier")
stamp(1)
for r in reads(0, 0, 0): r()
g.LBL("L_cloop")
for par in range(2):
    I("s_waitcnt lgkmcnt(0)")
    rd = reads(1, 1, par)
    for idx, (a, T) in enumerate(MORD):
        mfma(0, a, T)
        if idx < len(rd): rd[idx]()
        if idx == 16:
            I(f"s_add_u32 s{S_STG}, s{S_STG}, {ASTG}")
            I(f"s_cmp_ge_u32 s{S_STG}, {ASTG*NA}")
            I(f"s_cselect_b32 s{S_STG}, 0, s{S_STG}")
        if idx == 18 and par == 1: I(f"s_add_u32 s{S_U}, s{S_U}, 2")
        if idx == 20:
            for tt in range(2): I(f"v_add_u32 v{VA+tt}, s{S_STG}, v{VA0+tt}")
    I("s_waitcnt lgkmcnt(0)")
    rd = reads(0, 0, par ^ 1)
    for idx, (a, T) in enumerate(MORD):
        mfma(1, a, T)
        if idx == BP:
            if par == 1:
                I(f"s_cmp_ge_u32 s{S_U}, 16")
                I("s_cbranch_scc1 L_ctail")
            I("s_barrier")
        if idx > BP and idx - BP - 1 < len(rd): rd[idx-BP-1]()
I("s_branch L_cloop")
g.LBL("L_ctail")
for idx, (a, T) in enumerate(MORD):
    if idx > BP: mfma(1, a, T)
stamp(2)
I("s_nop 7")
nt = 0
for a in range(4):
    for r in range(4):
        d = 8 + 4 * (nt % 8); nt += 1
        for p in range(4): I(f"v_cvt_pk_bf16_f32 v{d+p}, v{acc(a,2*p)+r}, v{acc(a,2*p+1)+r}")
        I(f"s_mov_b32 s{S_T0}, {(16*a+r)*N*2}")
        if opt["store"]: I(f"buffer_store_dwordx4 v[{d}:{d+3}], v{VOUT}, s[{S_OUT}:{S_OUT+3}], s{S_T0} offen")
if opt["stamps"]:
    I("s_waitcnt vmcnt(0)"); stamp(3)
I("s_endpgm")

g.LBL("L_prod")
VQ = [128, 160]
VRAW = 192
VAT = [196, 204]
VSC = 212
VT = 220
VO = [32, 48]
VOB = 8; VOA = 16; VTS = 24; VTA = 25; VW = 26
I(f"s_sub_u32 s{S_T2}, s{S_WV}, 4")
I("v_and_b32 v3, 31, v2"); I("v_lshrrev_b32 v4, 5, v2")
C("voffB[e] = (16p+8h+e)*14336 + n0*4 + 16i")
I(f"s_mul_i32 s{S_T0}, s{S_T2}, {16*N*4}"); I(f"s_lshl_b32 s{S_T1}, s{S_NI}, 9"); I(f"s_add_u32 s{S_T0}, s{S_T0}, s{S_T1}")
I(f"v_mul_u32_u24 v5, {8*N*4}, v4"); I("v_lshl_add_u32 v5, v3, 4, v5"); I(f"v_add_u32 v{VOB}, s{S_T0}, v5")
for e in range(1, 8): I(f"v_add_u32 v{VOB+e}, {e*N*4}, v{VOB}")
I("s_waitcnt lgkmcnt(0)")
g.srd(S_Q, 6, K*N*4); g.srd(S_X, 4, M*K*2)
def ld_B(st, e, nt=False):
    b = VQ[st] + 4 * e
    I(f"buffer_load_dwordx4 v[{b}:{b+3}], v{VOB+e}, s[{S_Q}:{S_Q+3}], s{S_OFFB} offen" + (" nt" if nt else ""))
def ld_A(j):
    if j % 4 == 0:
        if j == 0: I(f"s_add_u32 m0, s{S_STG}, s{S_MBASE}")
        else:      I("s_add_u32 m0, m0, 4096")
        I("s_nop 0")
    I(f"buffer_load_dwordx4 v{VOA+j}, s[{S_X}:{S_X+3}], s{S_OFFA} offen offset:{(j%4)*1024} lds")
I(f"s_mov_b32 s{S_OFFB}, 0")
for e in range(8): ld_B(0, e, opt["ntsteps"] > 0)
stamp_setup(); stamp(0, take=False)
EX = 1 if opt["stamps"] else 0
C("voffA[j] = (m0+64p+8j+(l>>3))*2048 + (((l&7)^((4(j&1)+(l>>4))&7))*16) - (j%4)*1024")
I(f"s_lshl_b32 s{S_T0}, s{S_T2}, 6"); I(f"s_lshl_b32 s{S_T1}, s{S_MI}, 8"); I(f"s_add_u32 s{S_T0}, s{S_T0}, s{S_T1}"); I(f"s_lshl_b32 s{S_T0}, s{S_T0}, 11")
I("v_lshrrev_b32 v5, 3, v2"); I("v_lshlrev_b32 v5, 11, v5"); I(f"v_add_u32 v5, s{S_T0}, v5")
I("v_and_b32 v6, 7, v2"); I("v_lshrrev_b32 v7, 4, v2"); I("v_xor_b32 v6, v6, v7"); I("v_xor_b32 v7, 4, v6")
I("v_lshl_add_u32 v6, v6, 4, v5"); I("v_lshl_add_u32 v7, v7, 4, v5")
for j in range(8): I(f"v_add_u32 v{VOA+j}, {8*j*2048 - (j%4)*1024}, v{6 + (j&1)}")
I(f"s_lshl_b32 s{S_MBASE}, s{S_T2}, 13")
I(f"s_mov_b32 s{S_OFFA}, 0"); I(f"s_mov_b32 s{S_STG}, 0")
for j in range(8): ld_A(j)
I(f"s_mov_b32 s{S_OFFB}, {64*N*4}")
for e in range(8): ld_B(1, e, opt["ntsteps"] > 1)
C("LDS write address: BBASE + (2p+h)*2048 + (i&1)*1024 + (((i>>1)^(4*(i&1)))*16)")
I(f"s_lshl_b32 s{S_T0}, s{S_T2}, 12"); I(f"s_add_u32 s{S_T0}, s{S_T0}, {BBASE}")
I("v_lshlrev_b32 v5, 11, v4"); I(f"v_add_u32 v5, s{S_T0}, v5")
I("v_and_b32 v6, 1, v3"); I("v_lshl_add_u32 v5, v6, 10, v5"); I("v_lshlrev_b32 v6, 2, v6")
I("v_lshrrev_b32 v7, 1, v3"); I("v_xor_b32 v7, v7, v6"); I(f"v_lshl_add_u32 v{VW}, v7, 4, v5")
C("table addresses: scales SBASE + (p>>1)*256 + 8i (+512/step); act TBASE + (16p+8h)*4 (+256/step)")
I(f"s_lshr_b32 s{S_T0}, s{S_T2}, 1"); I(f"s_lshl_b32 s{S_T0}, s{S_T0}, 8"); I(f"s_add_u32 s{S_T0}, s{S_T0}, {SBASE}")
I("v_lshlrev_b32 v5, 3, v3"); I(f"v_add_u32 v{VTS}, s{S_T0}, v5")
I(f"s_lshl_b32 s{S_T0}, s{S_T2}, 6"); I(f"s_add_u32 s{S_T0}, s{S_T0}, {TBASE}")
I("v_lshlrev_b32 v5, 5, v4"); I(f"v_add_u32 v{VTA}, s{S_T0}, v5")
I("s_barrier")

def tbl_read(st, so, ao):
    I(f"ds_read_b64 v[{VRAW}:{VRAW+1}], v{VTS} offset:{so}")
    I(f"ds_read_b64 v[{VRAW+2}:{VRAW+3}], v{VTS} offset:{so+8192}")
    I(f"ds_read_b128 v[{VAT[st]}:{VAT[st]+3}], v{VTA} offset:{ao}")
    I(f"ds_read_b128 v[{VAT[st]+4}:{VAT[st]+7}], v{VTA} offset:{ao+16}")
def unpack():
    ops = []
    for d in range(4):
        ops.append(f"v_lshlrev_b32 v{VSC+2*d}, 16, v{VRAW+d}"); ops.append(f"v_and_b32 v{VSC+2*d+1}, 0xffff0000, v{VRAW+d}")
    for T in range(4): ops.append(f"v_mul_f32 v{VSC+4+T}, -v{VSC+4+T}, v{VSC+T}")
    return ops if opt["deq"] else []
def rp_ops(st, rp):
    q = VQ[st] + 8 * rp
    cv = [f"v_cvt_f32_i32 v{VT+x}, v{q+x}" for x in range(8)]
    rest = [f"v_fma_f32 v{VT+x}, v{VT+x}, v{VSC+(x%4)}, v{VSC+4+(x%4)}" for x in range(8)]
    rest += [f"v_mul_f32 v{VT+x}, v{VT+x}, v{VAT[st]+2*rp+(x//4)}" for x in range(8)]
    rest += [f"v_cvt_pk_bf16_f32 v{VO[st]+4*c+rp}, v{VT+c}, v{VT+4+c}" for c in range(4)]
    return (cv, rest) if opt["deq"] else ([], [])

Q = []
def issue(tag, fn): fn(); Q.append(tag)
def wait_for(pred, extra=""):
    last = max([i for i, t in enumerate(Q) if pred(t)], default=-1)
    n = len(Q) - 1 - last
    assert n < 64
    if last >= 0: I(f"s_waitcnt vmcnt({n})" + extra)
    elif extra: I("s_waitcnt" + extra)
    del Q[:last+1]
Q += [("B", 0, e) for e in range(8)] + [("S",)] * EX + [("A", 0, j) for j in range(8)] + [("B", 1, e) for e in range(8)]

def do_rp(u, rp, loadsB, amid, nt=False):
    st = u % 2
    wait_for(lambda t: t[0] == "B" and t[1] == u and t[2] <= 2*rp+1)
    cv, rest = rp_ops(st, rp)
    for o in cv[:4]: I(o)
    if loadsB: issue(("B", u+2, 2*rp), lambda: ld_B(st, 2*rp, nt))
    for o in cv[4:]: I(o)
    for o in rest[:4]: I(o)
    if loadsB: issue(("B", u+2, 2*rp+1), lambda: ld_B(st, 2*rp+1, nt))
    rest = rest[4:]
    n = len(amid)
    for k in range(n + 1):
        lo = len(rest) * k // (n + 1) if n else 0
        hi = len(rest) * (k + 1) // (n + 1) if n else len(rest)
        for o in rest[lo:hi]: I(o)
        if k < n: issue(("A", amid[k][0], amid[k][1]), (lambda j: (lambda: ld_A(j)))(amid[k][1]))

def interval(u, so, ao, loadsB, loadsA, nextrp0, nextB, nt=False, nt_next=False):
    st = u % 2
    if loadsA:
        I(f"s_add_u32 s{S_OFFA}, s{S_OFFA}, 128")
        I(f"s_add_u32 s{S_STG}, s{S_STG}, {ASTG}"); I(f"s_cmp_ge_u32 s{S_STG}, {ASTG*NA}"); I(f"s_cselect_b32 s{S_STG}, 0, s{S_STG}")
    A = [(u+1, j) for j in range(8)] if loadsA else []
    if nextrp0: tbl_read(st ^ 1, so, ao)
    do_rp(u, 1, loadsB, A[0:2], nt)
    do_rp(u, 2, loadsB, A[2:4], nt)
    do_rp(u, 3, loadsB, A[4:6], nt)
    for c in range(4):
        I(f"ds_write_b128 v{VW}, v[{VO[st]+4*c}:{VO[st]+4*c+3}] offset:{st*BBUF + c*256}")
    if nextrp0:
        I("s_waitcnt lgkmcnt(4)")
        up = unpack()
        for o in up[:6]: I(o)
        if loadsA: issue(("A", u+1, 6), lambda: ld_A(6))
        for o in up[6:]: I(o)
        I(f"s_add_u32 s{S_OFFB}, s{S_OFFB}, {64*N*4}")
        do_rp(u+1, 0, nextB, A[7:8], nt_next)
    else:
        for x in A[6:8]: issue(("A", x[0], x[1]), (lambda j: (lambda: ld_A(j)))(x[1]))
    wait_for(lambda t: t[0] == "A" and t[1] <= u, " lgkmcnt(0)")
    I("s_barrier")

C("rp0 of step 0")
tbl_read(0, 0, 0)
I("s_waitcnt lgkmcnt(0)")
for o in unpack(): I(o)
I(f"s_mov_b32 s{S_OFFB}, {2*64*N*4}")
NTS = opt["ntsteps"]
do_rp(0, 0, True, [], NTS > 2)
C("peeled intervals 0,1 (they bring the wait counts to the steady state)")
interval(0, 512, 256, True, True, True, True, NTS > 2, NTS > 3)
interval(1, 1024, 512, True, True, True, True, NTS > 3, False)
I(f"v_add_u32 v{VTS}, 1024, v{VTS}"); I(f"v_add_u32 v{VTA}, 512, v{VTA}")
I(f"s_mov_b32 s{S_U}, 2")
Q0 = [(t[0], t[1]-2) + t[2:] for t in Q]
g.LBL("L_ploop")
interval(2, 512, 256, True, True, True, True)
interval(3, 1024, 512, True, True, True, True)
I(f"v_add_u32 v{VTS}, 1024, v{VTS}"); I(f"v_add_u32 v{VTA}, 512, v{VTA}")
I(f"s_add_u32 s{S_U}, s{S_U}, 2")
I(f"s_cmp_lt_u32 s{S_U}, 12")
I("s_cbranch_scc1 L_ploop")
assert [(t[0], t[1]-4) + t[2:] for t in Q] == Q0, (Q, Q0)
Q[:] = [(t[0], t[1]+8) + t[2:] for t in Q]
C("tail intervals 12..15")
interval(12, 512, 256, True, True, True, True)
interval(13, 1024, 512, True, True, True, False)
interval(14, 1536, 768, False, True, True, False)
interval(15, 0, 0, False, False, False, False)
if opt["stamps"]:
    I("s_waitcnt vmcnt(0)"); stamp(2)
I("s_endpgm")

if opt["helpers"]:
    g.LBL("L_help")
    HS = opt["hstart"]
    I(f"s_sub_u32 s{S_SLOT}, s{S_SLOT}, 28")
    I("s_waitcnt lgkmcnt(0)")
    g.srd(S_Q, 6, K*N*4); g.srd(S_X, 4, M*K*2)
    stamp_setup(); stamp(0, take=False)
    I(f"s_cmp_ge_u32 s{S_WV}, 4")
    I("s_cbranch_scc1 L_help_a")
    C("waves 0-3: B lines. row = 32*(xcd&1) + 8*hs + 2*wave + (l>=28), line = l%28 ; lanes >= 56 off")
    I("v_cmp_gt_u32 vcc, 56, v2")
    I("s_and_saveexec_b64 s[66:67], vcc")
    I("v_cmp_le_u32 vcc, 28, v2")
    I("v_mov_b32 v3, 0"); I(f"v_mov_b32 v4, {N*4 - 28*128}")
    I("v_cndmask_b32 v3, v3, v4, vcc")
    I("v_lshl_add_u32 v3, v2, 7, v3")
    I(f"s_and_b32 s{S_T0}, s{S_XCD}, 1"); I(f"s_lshl_b32 s{S_T0}, s{S_T0}, 5")
    I(f"s_lshl_b32 s{S_T1}, s{S_SLOT}, 3"); I(f"s_add_u32 s{S_T0}, s{S_T0}, s{S_T1}")
    I(f"s_lshl_b32 s{S_T1}, s{S_WV}, 1"); I(f"s_add_u32 s{S_T0}, s{S_T0}, s{S_T1}")
    I(f"s_mul_i32 s{S_T0}, s{S_T0}, {N*4}")
    I(f"s_lshr_b32 s{S_T1}, s{S_XCD}, 1"); I(f"s_mul_i32 s{S_T1}, s{S_T1}, 3584"); I(f"s_add_u32 s{S_T0}, s{S_T0}, s{S_T1}")
    I(f"v_add_u32 v3, s{S_T0}, v3")
    I(f"s_mov_b32 s{S_OFFB}, {HS*64*N*4}")
    g.LBL("L_hb")
    I(f"buffer_load_dword v8, v3, s[{S_Q}:{S_Q+3}], s{S_OFFB} offen")
    I(f"s_add_u32 s{S_OFFB}, s{S_OFFB}, {64*N*4}")
    I(f"s_cmp_lt_u32 s{S_OFFB}, {16*64*N*4}")
    I("s_cbranch_scc1 L_hb")
    I("s_mov_b64 exec, s[66:67]")
    if opt["stamps"]:
        I("s_waitcnt vmcnt(0)"); stamp(2)
    I("s_endpgm")
    g.LBL("L_help_a")
    C("A lines: rows 1024*(xcd&1) + 256*(xcd>>1) + 64*hs + 0..63")
    I(f"s_and_b32 s{S_T0}, s{S_XCD}, 1"); I(f"s_lshl_b32 s{S_T0}, s{S_T0}, 10")
    I(f"s_lshr_b32 s{S_T1}, s{S_XCD}, 1"); I(f"s_lshl_b32 s{S_T1}, s{S_T1}, 8"); I(f"s_add_u32 s{S_T0}, s{S_T0}, s{S_T1}")
    I(f"s_lshl_b32 s{S_T1}, s{S_SLOT}, 6"); I(f"s_add_u32 s{S_T0}, s{S_T0}, s{S_T1}")
    if opt["hsmem"]:
        C("waves 4-7: 16 rows each through the scalar path (64 B per load)")
        I(f"s_sub_u32 s{S_T1}, s{S_WV}, 4"); I(f"s_lshl_b32 s{S_T1}, s{S_T1}, 4"); I(f"s_add_u32 s{S_T0}, s{S_T0}, s{S_T1}")
        I(f"s_lshl_b32 s{S_T0}, s{S_T0}, 11"); I(f"s_add_u32 s{S_T0}, s{S_T0}, {HS*128}")
        I(f"s_add_u32 s42, s4, s{S_T0}"); I("s_addc_u32 s43, s5, 0")
        I(f"s_mov_b32 s{S_U}, {HS}")
        g.LBL("L_ha")
        for r in range(16):
            I(f"s_load_dword s{68+(2*r)%16}, s[42:43], {r*2048}")
            I(f"s_load_dword s{69+(2*r)%16}, s[42:43], {r*2048+64}")
            if r % 8 == 7: I("s_waitcnt lgkmcnt(0)")
        I("s_add_u32 s42, s42, 128"); I("s_addc_u32 s43, s43, 0")
        I(f"s_add_u32 s{S_U}, s{S_U}, 1"); I(f"s_cmp_lt_u32 s{S_U}, 16"); I("s_cbranch_scc1 L_ha")
    else:
        I(f"s_cmp_ge_u32 s{S_WV}, 5"); I("s_cbranch_scc1 L_end")
        I(f"s_lshl_b32 s{S_T0}, s{S_T0}, 11")
        I("v_lshlrev_b32 v3, 11, v2"); I(f"v_add_u32 v3, s{S_T0}, v3")
        I(f"s_mov_b32 s{S_OFFA}, {HS*128}")
        g.LBL("L_ha")
        I(f"buffer_load_dword v8, v3, s[{S_X}:{S_X+3}], s{S_OFFA} offen")
        I(f"s_add_u32 s{S_OFFA}, s{S_OFFA}, 128"); I(f"s_cmp_lt_u32 s{S_OFFA}, 2048"); I("s_cbranch_scc1 L_ha")
    if opt["stamps"]:
        I("s_waitcnt vmcnt(0)"); stamp(2)
g.LBL("L_end")
I("s_endpgm")

out = HEADER + f"""; Launch geometry (generated by work/gen3.py)
; @launch grid=({NWG},1,1) block=(512,1,1) lds={LDS_BYTES}
.amdgcn_target "amdgcn-amd-amdhsa--gfx950"
.text
""" + kernel_text(KN, g.text()) + """.section .rodata,"a"
""" + kd(KN, 256, 88)
open(sys.argv[1], "w").write(out)
print(LDS_BYTES, len(g.L))
```

```python
import sys
from asmlib import *
opt = dict(stamps=0, prio=1, barpos=14, ostf=3, cpf=1, hp0=1, hdel=0, npoll=1, epi=1, prepoll=1, smpos=2, lag=0, a0mode=0, lh=2, pdel=1, hx=1, est=1, a0f=0, smL=0, sp=0, hm=1, il=0, actnt=0, sznt=1)
for a in sys.argv[2:]:
    k, v = a.split("="); assert k in opt, k; opt[k] = int(v)
g = Asm(); I = g.I; C = g.C
NWG = 256
STG = 49152; NSTG = 3; BOFF = 32768
CNT = STG * NSTG
LDS_BYTES = CNT + 64
WB_OFF = (1 << 20) if opt["stamps"] else 0
WB_BYTES = 28 * 16 * 16384
FB_OFF = WB_BYTES
FL_OFF = FB_OFF + 28 * 128
WS_BYTES = FL_OFF + 28 * 128
FKEY = 0x9e3779b1
OSTF = {0: "", 1: " sc1", 2: " sc0 sc1", 3: " nt", 4: " sc1 nt"}[opt["ostf"]]
S_X, S_Q, S_S, S_Z, S_ACT, S_OUT, S_WB = 16, 20, 24, 28, 32, 36, 68
S_WV = 44; S_MI = 45; S_NI = 46; S_T0 = 47; S_T1 = 48; S_U = 49; S_T2 = 55
S_OB = 50; S_OA = 51; S_STG = 52; S_MA = 53; S_XCD = 54; S_SLOT = 63; S_P = 66; S_CS = 67; S_PB = 76; S_NP = 77; S_FL = 78; S_PEND = 79; S_SP = 80
S_F = 84
VQ = [128, 56]; VR = [160, 88]; VSCs = [168, 8]; VOs = [32, 32]; VOA = 16
VAD = [(5, 6, 7), (100, 101, 102)]
VFA = 113; VF0 = 114; VCN = 115; VTMP = 116

def kreg(idx): return 100 if idx == 0 else 84 + 2*idx
def stamp_setup():
    if not opt["stamps"]: return
    g.srd(56, 42, 1 << 20)
    I("s_lshl_b32 s62, s2, 3"); I(f"s_add_u32 s62, s62, s{S_WV}"); I("s_lshl_b32 s62, s62, 6")
def keep(idx):
    if opt["stamps"]: I(f"s_memrealtime s[{kreg(idx)}:{kreg(idx)+1}]")
NK = [0]
def keep_if(reg, val, idx):
    if not opt["stamps"]: return
    NK[0] += 1
    I(f"s_cmp_lg_u32 s{reg}, {val}"); I(f"s_cbranch_scc1 L_k{NK[0]}"); keep(idx); g.LBL(f"L_k{NK[0]}")
def flush_keeps(idxs, vt=122):
    if not opt["stamps"]: return
    I("s_waitcnt lgkmcnt(0)")
    for idx in idxs:
        I(f"v_mov_b32 v{vt}, s{kreg(idx)}"); I(f"v_mov_b32 v{vt+1}, 0"); I(f"v_mov_b32 v{vt+2}, s62")
        I(f"buffer_store_dwordx2 v[{vt}:{vt+1}], v{vt+2}, s[56:59], 0 offen offset:{idx*8}")
def next_stage():
    I(f"s_add_u32 s{S_STG}, s{S_STG}, {STG}"); I(f"s_cmp_ge_u32 s{S_STG}, {STG*NSTG}"); I(f"s_cselect_b32 s{S_STG}, 0, s{S_STG}")
def ld_A(n=8):
    for j in range(n):
        if j % 4 == 0:
            if j == 0: I(f"s_add_u32 m0, s{S_STG}, s{S_MA}")
            else:      I("s_add_u32 m0, m0, 4096")
            if j == 8: I(f"s_add_u32 s{S_OA}, s{S_OA}, {64*2048}")
            else: I("s_nop 0")
        I(f"buffer_load_dwordx4 v{VOA+j%8}, s[{S_X}:{S_X+3}], s{S_OA} offen offset:{(j%4)*1024} lds")
def step_of_pos():
    I(f"s_add_u32 s{S_T0}, s{S_U}, s{S_MI}"); I(f"s_add_u32 s{S_CS}, s{S_T0}, 7"); I(f"s_and_b32 s{S_CS}, s{S_CS}, 7")
    I(f"s_and_b32 s{S_T0}, s{S_T0}, 7"); I(f"s_or_b32 s{S_T0}, s{S_T0}, 8")
    I(f"s_cmp_ge_u32 s{S_U}, 9")
    I(f"s_cselect_b32 s{S_CS}, s{S_T0}, s{S_CS}")
def common_setup():
    I(f"s_add_u32 s{S_WB}, s42, {WB_OFF}"); I(f"s_addc_u32 s{S_WB+1}, s43, 0"); I(f"s_mov_b32 s{S_WB+2}, {WS_BYTES}"); I(f"s_mov_b32 s{S_WB+3}, 0x00020000")
    C("hand-off words: chunk published <=> flag == base + KEY; base as found at entry (scalar path)")
    I(f"s_lshl_b32 s{S_T0}, s{S_NI}, 7"); I(f"s_add_u32 s{S_T0}, s{S_T0}, {FB_OFF}")
    I(f"s_add_u32 s82, s{S_WB}, s{S_T0}"); I(f"s_addc_u32 s83, s{S_WB+1}, 0")
    I(f"s_load_dwordx16 s[{S_F}:{S_F+15}], s[82:83], 0")
    I("v_and_b32 v29, 15, v2"); I("v_lshlrev_b32 v29, 2, v29"); I(f"v_add_u32 v29, s{S_T0}, v29")
    I(f"v_add_u32 v{VFA}, {FL_OFF - FB_OFF}, v29")
    I(f"s_lshl_b32 s{S_T0}, s{S_NI}, 4"); I(f"s_add_u32 s{S_T0}, s{S_T0}, s{S_MI}"); I(f"s_lshl_b32 s{S_SP}, s{S_T0}, 14")
    I("v_lshlrev_b32 v25, 4, v2")
    g.srd(S_X, 4, M*K*2)
    stamp_setup()
    C("A DMA offsets: (m0+64b+8j+(l>>3))*2048 + (((l&7)^((4(j&1)+(l>>4))&7))*16) - (j%4)*1024")
    I(f"s_lshl_b32 s{S_T0}, s{S_T2}, 6"); I(f"s_lshl_b32 s{S_T1}, s{S_MI}, 8"); I(f"s_add_u32 s{S_T0}, s{S_T0}, s{S_T1}"); I(f"s_lshl_b32 s{S_T0}, s{S_T0}, 11")
    I("v_lshrrev_b32 v11, 3, v2"); I("v_lshlrev_b32 v11, 11, v11"); I(f"v_add_u32 v11, s{S_T0}, v11")
    I("v_and_b32 v12, 7, v2"); I("v_lshrrev_b32 v13, 4, v2"); I("v_xor_b32 v12, v12, v13"); I("v_xor_b32 v13, 4, v12")
    I("v_lshl_add_u32 v12, v12, 4, v11"); I("v_lshl_add_u32 v13, v13, 4, v11")
    for j in range(8): I(f"v_add_u32 v{VOA+j}, {8*j*2048 - (j%4)*1024}, v{12 + (j&1)}")
    I(f"s_lshl_b32 s{S_MA}, s{S_T2}, 13")
def flags_to_vgpr():
    I("s_waitcnt lgkmcnt(0)")
    I(f"v_mov_b32 v{VF0}, 0")
    for l in range(16): I(f"v_writelane_b32 v{VF0}, s{S_F+l}, {l}")
    I(f"v_add_u32 v{VF0}, {FKEY:#x}, v{VF0}")

keep(0)
I(f"s_cmp_ge_u32 s2, {NWG}")
I("s_cbranch_scc1 L_end")
I("s_load_dwordx4 s[4:7], s[0:1], 0")
I("s_load_dwordx4 s[8:11], s[0:1], 16")
I("s_load_dwordx4 s[12:15], s[0:1], 32")
I("s_load_dwordx2 s[42:43], s[0:1], 56")
I("v_lshrrev_b32 v1, 6, v0")
I("v_and_b32 v2, 63, v0")
I(f"s_and_b32 s{S_XCD}, s2, 7")
I(f"v_readfirstlane_b32 s{S_WV}, v1")
I(f"s_lshr_b32 s{S_SLOT}, s2, 3")
I("v_and_b32 v3, 31, v2"); I("v_lshrrev_b32 v4, 5, v2")
I(f"s_and_b32 s{S_P}, s{S_WV}, 3")
I(f"s_cmp_ge_u32 s{S_SLOT}, 28")
I("s_cbranch_scc1 L_help")
I(f"s_and_b32 s{S_MI}, s{S_XCD}, 1"); I(f"s_lshl_b32 s{S_MI}, s{S_MI}, 2")
I(f"s_and_b32 s{S_T2}, s{S_SLOT}, 3"); I(f"s_add_u32 s{S_MI}, s{S_MI}, s{S_T2}")
I(f"s_lshr_b32 s{S_NI}, s{S_XCD}, 1"); I(f"s_mul_i32 s{S_NI}, s{S_NI}, 7")
I(f"s_lshr_b32 s{S_T2}, s{S_SLOT}, 2"); I(f"s_add_u32 s{S_NI}, s{S_NI}, s{S_T2}")
C("panel columns: two 64-column pieces of the 256-column block ni>>1: pieces (0,3) for even ni, (1,2) for odd ni")
if opt["il"]:
    I(f"s_and_b32 s74, s{S_NI}, 1"); I("s_lshl_b32 s75, s74, 1"); I("s_sub_u32 s75, 2, s75"); I("s_lshl_b32 s75, s75, 4")
    I(f"s_lshr_b32 s{S_T0}, s{S_NI}, 1"); I(f"s_lshl_b32 s{S_T0}, s{S_T0}, 2"); I(f"s_add_u32 s74, s74, s{S_T0}"); I("s_lshl_b32 s74, s74, 4")
else:
    I("s_mov_b32 s75, 0"); I(f"s_lshl_b32 s74, s{S_NI}, 5")
I("v_lshrrev_b32 v14, 4, v3"); I("v_mul_u32_u24 v14, s75, v14"); I("v_add3_u32 v14, v14, v3, s74")
C("v5 = q offset (64*mi+16p+8h)*14336 + 16*quad ; v6 = scale offset ; v7 = act offset (chunk E; L = +8 steps)")
I(f"s_lshl_b32 s{S_T2}, s{S_MI}, 2"); I(f"s_add_u32 s{S_T2}, s{S_T2}, s{S_P}")
I(f"s_mul_i32 s{S_T0}, s{S_T2}, {16*N*4}")
I(f"v_mul_u32_u24 v5, {8*N*4}, v4"); I("v_lshl_add_u32 v5, v14, 4, v5"); I(f"v_add_u32 v5, s{S_T0}, v5")
I(f"s_lshr_b32 s{S_T0}, s{S_T2}, 1"); I(f"s_mul_i32 s{S_T0}, s{S_T0}, {N*2}")
I("v_lshlrev_b32 v6, 3, v14"); I(f"v_add_u32 v6, s{S_T0}, v6")
I(f"s_lshl_b32 s{S_T0}, s{S_T2}, 5"); I("v_lshlrev_b32 v7, 4, v4"); I(f"v_add_u32 v7, s{S_T0}, v7")
C("v8 = image offset in chunk: (2p+h)*2048 + (i&1)*1024 + (((i>>1)^(4*(i&1)))*16)  (+ c*256)")
I(f"s_cmp_lt_u32 s{S_WV}, 4")
I("s_cbranch_scc1 L_cons")

I("s_waitcnt lgkmcnt(0)")
g.srd(S_Q, 6, K*N*4)
Q = []
def ldq(st, e):
    I(f"s_mov_b32 s{S_T0}, {(e + 512*st)*N*4}")
    I(f"buffer_load_dwordx4 v[{VQ[st]+4*e}:{VQ[st]+4*e+3}], v{VAD[st][0]}, s[{S_Q}:{S_Q+3}], s{S_T0} offen nt"); Q.append(("q", st, e))
def small(st):
    R = VR[st]
    I(f"s_mov_b32 s{S_T0}, {st*16*N*2}")
    I(f"buffer_load_dwordx2 v[{R}:{R+1}], v{VAD[st][1]}, s[{S_S}:{S_S+3}], s{S_T0} offen" + (" nt" if opt["sznt"] else ""))
    I(f"buffer_load_dwordx2 v[{R+2}:{R+3}], v{VAD[st][1]}, s[{S_Z}:{S_Z+3}], s{S_T0} offen" + (" nt" if opt["sznt"] else ""))
    I(f"buffer_load_dwordx4 v[{R+4}:{R+7}], v{VAD[st][2]}, s[{S_ACT}:{S_ACT+3}], 0 offen offset:{st*1024}" + (" nt" if opt["actnt"] else "")); Q.extend([("s", st, 0)]*3)
def wait_for(pred):
    last = max([i for i, t in enumerate(Q) if pred(t)], default=-1)
    if last >= 0: I(f"s_waitcnt vmcnt({len(Q)-1-last})")
    del Q[:last+1]
for e in range(8):
    if e == opt["smpos"]:
        g.srd(S_S, 8, 32*N*2); g.srd(S_Z, 10, 32*N*2); g.srd(S_ACT, 12, K*2); small(0)
    ldq(0, e)
I("s_barrier")
I(f"s_sub_u32 s{S_T2}, s{S_WV}, 5"); I(f"s_lshl_b32 s{S_T2}, s{S_T2}, 1"); I(f"s_and_b32 s{S_T2}, s{S_T2}, 2")
common_setup()
I(f"s_lshl_b32 s{S_T0}, s{S_NI}, 18"); I(f"v_add_u32 v24, s{S_T0}, v25")
C("v8 = image offset in chunk: (2p+h)*2048 + (i&1)*1024 + (((i>>1)^(4*(i&1)))*16)  (+ c*256)")
I(f"s_lshl_b32 s{S_T0}, s{S_P}, 12")
I("v_lshlrev_b32 v8, 11, v4"); I(f"v_add_u32 v8, s{S_T0}, v8")
I("v_and_b32 v9, 1, v3"); I("v_lshl_add_u32 v8, v9, 10, v8"); I("v_lshlrev_b32 v9, 2, v9")
I("v_lshrrev_b32 v10, 1, v3"); I("v_xor_b32 v10, v10, v9"); I("v_lshl_add_u32 v8, v10, 4, v8")
flags_to_vgpr()
def unpack(st):
    R = VR[st]; VSC = VSCs[st]
    wait_for(lambda t: t[0] == "s" and t[1] == st)
    for d in range(4):
        I(f"v_lshlrev_b32 v{VSC+2*d}, 16, v{R+d}"); I(f"v_and_b32 v{VSC+2*d+1}, 0xffff0000, v{R+d}")
    for d in range(4):
        I(f"v_lshlrev_b32 v{VSC+8+2*d}, 16, v{R+4+d}"); I(f"v_and_b32 v{VSC+9+2*d}, 0xffff0000, v{R+4+d}")
    for T in range(4): I(f"v_mul_f32 v{VSC+4+T}, -v{VSC+4+T}, v{VSC+T}")
def conv_row(st, e, after_wait=None):
    wait_for(lambda t: t == ("q", st, e))
    if after_wait: after_wait()
    q = VQ[st] + 4*e; o = VOs[st]; VSC = VSCs[st]
    for c in range(4): I(f"v_cvt_f32_i32 v{q+c}, v{q+c}")
    for c in range(4): I(f"v_fma_f32 v{q+c}, v{q+c}, v{VSC+c}, v{VSC+4+c}")
    for c in range(4): I(f"v_mul_f32 v{q+c}, v{q+c}, v{VSC+8+e}")
    if e & 1:
        for c in range(4): I(f"v_cvt_pk_bf16_f32 v{o+4*c+e//2}, v{q-4+c}, v{q+c}")
C("dequantise: w = bf16(((float)q*s - z*s) * a[k]), row by row as the loads land")
VO = 32
I(f"v_mov_b32 v{VCN}, {CNT}"); I(f"v_mov_b32 v{VTMP}, 1")
unpack(0)
for e in range(8): conv_row(0, e)
for c in range(4 if opt["est"] else 0): I(f"buffer_store_dwordx4 v[{VO+4*c}:{VO+4*c+3}], v8, s[{S_WB}:{S_WB+3}], s{S_SP} offen offset:{c*256} sc1")
for c in range(4): I(f"ds_write_b128 v8, v[{VO+4*c}:{VO+4*c+3}] offset:{BOFF + c*256}")
I("s_waitcnt lgkmcnt(0)")
keep(1)
I("s_barrier")
I("s_waitcnt vmcnt(0)")
keep(2)
I("s_mov_b64 exec, 1")
I(f"ds_add_rtn_u32 v{VTMP+1}, v{VCN}, v{VTMP}")
I("s_waitcnt lgkmcnt(0)")
I(f"v_readfirstlane_b32 s{S_T0}, v{VTMP+1}")
I(f"s_cmp_lg_u32 s{S_T0}, 3")
I("s_cbranch_scc1 L_nf0")
I(f"s_lshl_b32 s{S_T1}, 1, s{S_MI}")
I(f"s_mov_b32 exec_lo, s{S_T1}")
I(f"buffer_store_dword v{VF0}, v{VFA}, s[{S_WB}:{S_WB+3}], 0 offen sc1")
g.LBL("L_nf0")
I("s_mov_b64 exec, -1")
if opt["pdel"]: I("s_barrier")
I(f"s_mov_b32 s{S_STG}, {STG}")
I(f"s_mov_b32 s{S_U}, 2")
I(f"s_cmp_eq_u32 s{S_WV}, 4")
I("s_cbranch_scc1 L_bload")
I(f"s_cmp_eq_u32 s{S_WV}, 7")
I("s_cbranch_scc1 L_copy")
C("waves 5,6: A tiles")
I(f"s_lshl_b32 s{S_OA}, s{S_MI}, 7"); I(f"s_add_u32 s{S_OA}, s{S_OA}, 1024"); ld_A(16)
g.LBL("L_aloop")
step_of_pos(); next_stage(); I(f"s_lshl_b32 s{S_OA}, s{S_CS}, 7"); ld_A(16)
I("s_waitcnt vmcnt(16)")
I("s_barrier")
I(f"s_add_u32 s{S_U}, s{S_U}, 1")
I(f"s_cmp_lt_u32 s{S_U}, 16")
I("s_cbranch_scc1 L_aloop")
I("s_waitcnt vmcnt(0)")
I("s_barrier")
flush_keeps([0, 1, 2])
I("s_endpgm")

g.LBL("L_copy")
C("wave 7: copy the L image (stage 1, complete at B_1) out to ws, publish it, end")
I(f"v_add_u32 v26, {STG + BOFF}, v25")
I(f"s_add_u32 s{S_SP}, s{S_SP}, {8*16384}")
I("s_barrier")
for j in range(16): I(f"ds_read_b128 v[{128+4*j}:{131+4*j}], v26 offset:{j*1024}")
I("s_waitcnt lgkmcnt(0)")
I("s_barrier")
for jj in range(4):
    for j in range(4): I(f"buffer_store_dwordx4 v[{128+16*jj+4*j}:{131+16*jj+4*j}], v25, s[{S_WB}:{S_WB+3}], s{S_SP} offen offset:{j*1024} sc1")
    I(f"s_add_u32 s{S_SP}, s{S_SP}, 4096")
    if jj == 1: I("s_barrier")
I("s_barrier")
I("s_waitcnt vmcnt(0)")
I(f"s_lshl_b32 s{S_T1}, 256, s{S_MI}")
I(f"s_mov_b32 exec_lo, s{S_T1}"); I("s_mov_b32 exec_hi, 0")
I(f"buffer_store_dword v{VF0}, v{VFA}, s[{S_WB}:{S_WB+3}], 0 offen sc1")
I("s_mov_b64 exec, -1")
flush_keeps([0, 1, 2])
I("s_endpgm")

g.LBL("L_bload")
C("wave 4: S_U next position to issue, S_PB last barrier passed, S_FL mask of published steps")
I(f"s_mov_b32 s{S_PB}, 0"); I(f"s_mov_b32 s{S_FL}, 0"); I(f"s_mov_b32 s{S_NP}, 0")
if opt["sp"]:
    C("first looks at the flags go through the scalar path (they do not queue behind the vector loads)")
    step_of_pos()
    I("s_mov_b32 s81, 0")
    I("s_mov_b64 exec, 0xffff")
    g.LBL("L_spoll")
    I(f"s_load_dwordx16 s[20:35], s[82:83], {FL_OFF - FB_OFF} glc")
    I("s_waitcnt lgkmcnt(0)")
    for l in range(8): I(f"v_writelane_b32 v28, s{20+l}, {l}")
    I(f"v_cmp_eq_u32 vcc, v28, v{VF0}")
    I(f"s_and_b32 s{S_FL}, vcc_lo, 0xff")
    I(f"s_bitcmp1_b32 s{S_FL}, s{S_CS}")
    I("s_cbranch_scc1 L_spx")
    I("s_add_u32 s81, s81, 1"); I(f"s_cmp_lt_u32 s81, {opt['sp']}"); I("s_cbranch_scc1 L_spoll")
    g.LBL("L_spx")
    I("s_mov_b64 exec, -1")
    pass
g.LBL("L_sm")
I(f"s_mov_b32 s{S_PEND}, 0")
I(f"s_cmp_ge_u32 s{S_U}, 16")
I("s_cbranch_scc1 L_trybar")
step_of_pos()
I(f"s_bitcmp1_b32 s{S_FL}, s{S_CS}")
I("s_cbranch_scc0 L_dopoll")
I(f"s_add_u32 s{S_T0}, s{S_PB}, 2")
I(f"s_cmp_gt_u32 s{S_U}, s{S_T0}")
I("s_cbranch_scc1 L_trybar")
keep_if(S_U, 2, 5); keep_if(S_U, 8, 6)
next_stage()
I(f"s_lshl_b32 s{S_OB}, s{S_CS}, 14")
for jj in range(4):
    I(f"s_add_u32 m0, s{S_STG}, {BOFF + jj*4096}")
    if jj: I(f"s_add_u32 s{S_OB}, s{S_OB}, 4096")
    else: I("s_nop 0")
    for j in range(4): I(f"buffer_load_dwordx4 v24, s[{S_WB}:{S_WB+3}], s{S_OB} offen offset:{j*1024} lds")
I(f"s_add_u32 s{S_U}, s{S_U}, 1")
I("s_branch L_sm")
g.LBL("L_dopoll")
I("s_mov_b64 exec, 0xffff")
I(f"buffer_load_dword v28, v{VFA}, s[{S_WB}:{S_WB+3}], 0 offen sc1")
I(f"s_add_u32 s{S_NP}, s{S_NP}, 1")
I(f"s_mov_b32 s{S_PEND}, 1")
if opt["npoll"]:
    I(f"s_cmp_le_u32 s{S_NP}, {opt['npoll']}")
    I("s_cbranch_scc1 L_nobar")
g.LBL("L_trybar")
I(f"s_sub_u32 s{S_T0}, s{S_U}, s{S_PB}")
I(f"s_cmp_le_u32 s{S_T0}, 1")
I("s_cbranch_scc1 L_nobar")
I(f"s_lshl_b32 s{S_T0}, s{S_T0}, 1"); I(f"s_add_u32 s{S_T0}, s{S_T0}, s{S_PEND}")
I(f"s_cmp_eq_u32 s{S_T0}, 6"); I("s_cbranch_scc1 L_w16")
I(f"s_cmp_eq_u32 s{S_T0}, 7"); I("s_cbranch_scc1 L_w17")
I(f"s_cmp_eq_u32 s{S_T0}, 5"); I("s_cbranch_scc1 L_w1")
I("s_waitcnt vmcnt(0)")
g.LBL("L_w1")
I("s_waitcnt vmcnt(1)")
g.LBL("L_w16")
I("s_waitcnt vmcnt(16)")
g.LBL("L_w17")
I("s_waitcnt vmcnt(17)")
I("s_barrier")
I(f"s_add_u32 s{S_PB}, s{S_PB}, 1")
I(f"s_cmp_ge_u32 s{S_PB}, 15")
I("s_cbranch_scc1 L_bdone")
g.LBL("L_nobar")
I(f"s_cmp_eq_u32 s{S_PEND}, 0")
I("s_cbranch_scc1 L_sm")
I(f"s_cmp_lt_u32 s{S_NP}, 0x40000")
I("s_cbranch_scc1 L_waitpoll")
I(f"s_mov_b32 s{S_FL}, 0xffff")
g.LBL("L_waitpoll")
I("s_waitcnt vmcnt(0)")
g.LBL("L_gotpoll")
I(f"v_cmp_eq_u32 vcc, v28, v{VF0}")
I(f"s_or_b32 s{S_FL}, s{S_FL}, vcc_lo")
I("s_mov_b64 exec, -1")
I("s_branch L_sm")
g.LBL("L_bdone")
C("every sharer has published, hence read the base words: re-arm this WG's two words (base := flag value)")
I(f"s_lshl_b32 s{S_T1}, 0x101, s{S_MI}")
I(f"s_mov_b32 exec_lo, s{S_T1}"); I("s_mov_b32 exec_hi, 0")
I(f"buffer_store_dword v{VF0}, v29, s[{S_WB}:{S_WB+3}], 0 offen sc1")
I("s_mov_b64 exec, -1")
if opt["stamps"]: I("s_waitcnt lgkmcnt(0)"); I(f"s_mov_b32 s98, s{S_NP}" if not opt["sp"] else "s_mov_b32 s98, s81")
flush_keeps([0, 1, 2, 5, 6, 7])
I("s_endpgm")

g.LBL("L_cons")
I("v_mov_b32 v14, 0"); I(f"v_mov_b32 v{VCN}, {CNT}")
I(f"ds_write_b32 v{VCN}, v14")
I("v_mov_b32 v100, v5"); I("v_mov_b32 v101, v6"); I("v_mov_b32 v102, v7")
I(f"s_lshl_b32 s{S_T0}, s{S_P}, 12")
I("v_lshlrev_b32 v8, 11, v4"); I(f"v_add_u32 v8, s{S_T0}, v8")
I("v_and_b32 v9, 1, v3"); I("v_lshl_add_u32 v8, v9, 10, v8"); I("v_lshlrev_b32 v9, 2, v9")
I("v_lshrrev_b32 v10, 1, v3"); I("v_xor_b32 v10, v10, v9"); I("v_lshl_add_u32 v8, v10, 4, v8")
I(f"v_add_u32 v103, {STG}, v8")
C("A DMA offsets")
I(f"s_lshl_b32 s{S_T0}, s{S_P}, 6"); I(f"s_lshl_b32 s{S_T1}, s{S_MI}, 8"); I(f"s_add_u32 s{S_T0}, s{S_T0}, s{S_T1}"); I(f"s_lshl_b32 s{S_T0}, s{S_T0}, 11")
I("v_lshrrev_b32 v11, 3, v2"); I("v_lshlrev_b32 v11, 11, v11"); I(f"v_add_u32 v11, s{S_T0}, v11")
I("v_and_b32 v12, 7, v2"); I("v_lshrrev_b32 v13, 4, v2"); I("v_xor_b32 v12, v12, v13"); I("v_xor_b32 v13, 4, v12")
I("v_lshl_add_u32 v12, v12, 4, v11"); I("v_lshl_add_u32 v13, v13, 4, v11")
for j in range(8): I(f"v_add_u32 v{VOA+j}, {8*j*2048 - (j%4)*1024}, v{12 + (j&1)}")
I(f"s_lshl_b32 s{S_MA}, s{S_P}, 13")
I("s_waitcnt lgkmcnt(0)")
g.srd(S_X, 4, M*K*2); g.srd(S_Q, 6, K*N*4); g.srd(S_S, 8, 32*N*2); g.srd(S_Z, 10, 32*N*2); g.srd(S_ACT, 12, K*2)
I(f"s_mov_b32 s{S_STG}, 0"); I(f"s_lshl_b32 s{S_OA}, s{S_MI}, 7")
I("s_barrier")
Q[:] = []
LH = opt["lh"]
if opt["a0f"]: ld_A(); Q.extend([("A", 0, 0)]*8)
if opt["smL"]: small(1)
for e in range(LH): ldq(1, e)
if not opt["a0f"]: ld_A(); Q.extend([("A", 0, 0)]*8)
stamp_setup()
VA0 = 104; VA = 108; VOUT = 112
I("v_lshrrev_b32 v3, 4, v2"); I("v_and_b32 v4, 15, v2")
I("v_lshlrev_b32 v5, 7, v4"); I(f"v_add_u32 v5, s{S_MA}, v5"); I("v_bfe_u32 v6, v4, 1, 3")
for t in range(2):
    I(f"v_add_u32 v10, {4*t}, v3"); I("v_xor_b32 v10, v10, v6"); I(f"v_lshl_add_u32 v{VA0+t}, v10, 4, v5")
I("v_lshlrev_b32 v10, 11, v3"); I(f"v_add_u32 v10, {BOFF}, v10")
I(f"v_lshl_add_u32 v{VA0+2}, v4, 4, v10")
I("v_xor_b32 v11, 4, v4"); I(f"v_lshl_add_u32 v{VA0+3}, v11, 4, v10")
for t in range(4): I(f"v_mov_b32 v{VA+t}, v{VA0+t}")
I(f"s_lshl_b32 s{S_T0}, s{S_P}, 6"); I(f"s_lshl_b32 s{S_T1}, s{S_MI}, 8"); I(f"s_add_u32 s{S_T0}, s{S_T0}, s{S_T1}")
I(f"s_mul_i32 s{S_T0}, s{S_T0}, {N*2}"); I(f"s_lshl_b32 s{S_T1}, s74, 3"); I(f"s_add_u32 s{S_T0}, s{S_T0}, s{S_T1}")
I(f"v_mul_u32_u24 v10, {4*N*2}, v3"); I("v_lshl_add_u32 v10, v4, 4, v10")
I("v_lshrrev_b32 v11, 3, v4"); I("v_mul_u32_u24 v11, s75, v11"); I("v_lshl_add_u32 v10, v11, 3, v10"); I(f"v_add_u32 v{VOUT}, s{S_T0}, v10")
g.srd(S_OUT, 14, M*N*2)
ACC = 128
def acc(a, T): return ACC + (a * 8 + T) * 4
FS = [8, 56]
def fA(s, a): return FS[s] + 4 * a
def fB(s, T): return FS[s] + 16 + 4 * T
def rdA(s, a, t): I(f"ds_read_b128 v[{fA(s,a)}:{fA(s,a)+3}], v{VA+t} offset:{a*2048}")
def rdB(s, T, t): I(f"ds_read_b128 v[{fB(s,T)}:{fB(s,T)+3}], v{VA+2+(T>>2)} offset:{t*8192 + T*256}")
def mfma(s, a, T, first=False):
    d = acc(a, T)
    I(f"v_mfma_f32_16x16x32_bf16 v[{d}:{d+3}], v[{fA(s,a)}:{fA(s,a)+3}], v[{fB(s,T)}:{fB(s,T)+3}], " + ("0" if first else f"v[{d}:{d+3}]"))
MORD = []
for a in range(4): MORD += [(a, T) for T in (range(8) if a % 2 == 0 else range(7, -1, -1))]
def reads(s, t):
    return [lambda: rdA(s,0,t)] + [(lambda T: (lambda: rdB(s,T,t)))(T) for T in range(8)] + [(lambda a: (lambda: rdA(s,a,t)))(a) for a in range(1,4)]
BP = opt["barpos"]
def half0(first):
    I("s_waitcnt lgkmcnt(0)")
    rd = reads(1, 1)
    for idx, (a, T) in enumerate(MORD):
        mfma(0, a, T, first)
        if idx < len(rd): rd[idx]()
        if idx == 16: next_stage()
        if idx == 18: I(f"s_add_u32 s{S_U}, s{S_U}, 1")
        if idx == 20:
            for tt in range(4): I(f"v_add_u32 v{VA+tt}, s{S_STG}, v{VA0+tt}")
I("s_barrier")
if not opt["smL"]: small(1)
for e in range(LH, 8): ldq(1, e)
wait_for(lambda t: t[0] == "A")
keep(1)
if opt["stamps"]: I("s_memtime s[64:65]")
C("position 0 with one fragment set (the other registers receive the L chunk)")
for t in range(2):
    for r in reads(0, t): r()
    I("s_waitcnt lgkmcnt(0)")
    for (a, T) in MORD: mfma(0, a, T, t == 0)
if opt["pdel"]: I("s_barrier")
unpack(1)
for e in range(8): conv_row(1, e)
for c in range(4): I(f"ds_write_b128 v103, v[{VO+4*c}:{VO+4*c+3}] offset:{BOFF + c*256}")
keep(0)
if opt["prio"]: I(f"s_setprio {opt['prio']}")
I(f"s_mov_b32 s{S_U}, 1"); I(f"s_mov_b32 s{S_STG}, {STG}")
for tt in range(4): I(f"v_add_u32 v{VA+tt}, s{S_STG}, v{VA0+tt}")
I("s_waitcnt lgkmcnt(0)")
I("s_barrier")
keep(4)
for r in reads(0, 0): r()
g.LBL("L_cloop")
half0(False)
I("s_waitcnt lgkmcnt(0)")
rd = reads(0, 0)
for idx, (a, T) in enumerate(MORD):
    mfma(1, a, T)
    if idx == BP:
        I(f"s_cmp_ge_u32 s{S_U}, 16")
        I("s_cbranch_scc1 L_ctail")
        I("s_barrier")
        keep_if(S_U, 2, 5); keep_if(S_U, 9, 7)
    if idx > BP and idx - BP - 1 < len(rd): rd[idx-BP-1]()
I("s_branch L_cloop")
g.LBL("L_ctail")
def epi_ops(a):
    ops = []
    for r in range(4):
        d = 8 + 4 * ((a*4 + r) % 12)
        for p in range(4): ops.append(f"v_cvt_pk_bf16_f32 v{d+p}, v{acc(a,2*p)+r}, v{acc(a,2*p+1)+r}")
        ops.append(f"s_mov_b32 s{S_T0}, {(16*a+r)*N*2}")
        ops.append(f"buffer_store_dwordx4 v[{d}:{d+3}], v{VOUT}, s[{S_OUT}:{S_OUT+3}], s{S_T0} offen{OSTF}")
    return ops
pend = []; done_a = set()
for idx, (a, T) in enumerate(MORD):
    if idx <= BP: continue
    mfma(1, a, T)
    if opt["epi"]:
        for ap in range(3):
            if ap not in done_a and idx >= 8*ap + 7 + 8:
                pend += epi_ops(ap); done_a.add(ap)
        for o in pend[:3]: I(o)
        pend = pend[3:]
keep(2)
if opt["stamps"]: I("s_memtime s[60:61]")
for o in pend: I(o)
rest = [a for a in range(4) if a not in done_a]
for a in rest[:-1]:
    for o in epi_ops(a): I(o)
I("s_nop 7")
for o in epi_ops(rest[-1]): I(o)
if opt["stamps"]:
    I("s_waitcnt vmcnt(0)"); keep(3); I("s_waitcnt lgkmcnt(0)")
    I("s_sub_u32 s96, s60, s64")
    flush_keeps([0, 1, 2, 3, 4, 5, 6, 7])
I("s_endpgm")

g.LBL("L_help")
if opt["cpf"]:
    C("pull the kernel's code into this die's L2 (range-checked)")
    I("s_getpc_b64 s[56:57]")
    g.LBL("L_pc")
    I(f"s_sub_u32 s56, s56, L_pc-{KN}"); I("s_subb_u32 s57, s57, 0")
    I(f"s_mov_b32 s58, L_codeend-{KN}"); I("s_mov_b32 s59, 0x00020000")
    I("v_lshlrev_b32 v10, 7, v0")
    if opt["cpf"] == 2:
        I(f"s_cmp_eq_u32 s{S_SLOT}, 28"); I("s_cselect_b32 s58, s58, 0")
    if opt["cpf"] == 3:
        C("each of the die's four helpers takes every fourth line")
        I("v_lshlrev_b32 v10, 9, v0"); I(f"s_and_b32 s{S_T0}, s{S_SLOT}, 3"); I(f"s_lshl_b32 s{S_T0}, s{S_T0}, 7"); I(f"v_add_u32 v10, s{S_T0}, v10")
    I("buffer_load_dword v9, v10, s[56:59], 0 offen")
I(f"s_sub_u32 s{S_SLOT}, s{S_SLOT}, 28")
C("pass 0: tile mi=4*(xcd&1)+hs, rows 64*(wave&3)+lane, line mi (waves 0-3) / 8+mi (waves 4-7)")
I(f"s_and_b32 s{S_MI}, s{S_XCD}, 1"); I(f"s_lshl_b32 s{S_MI}, s{S_MI}, 2"); I(f"s_add_u32 s{S_MI}, s{S_MI}, s{S_SLOT}")
I(f"s_lshl_b32 s{S_T0}, s{S_MI}, 8"); I(f"s_lshl_b32 s{S_T1}, s{S_P}, 6"); I(f"s_add_u32 s{S_T0}, s{S_T0}, s{S_T1}")
I(f"s_lshl_b32 s{S_T0}, s{S_T0}, 11")
I("v_lshlrev_b32 v5, 11, v2"); I(f"v_add_u32 v5, s{S_T0}, v5")
I(f"s_lshr_b32 s{S_T0}, s{S_WV}, 2"); I(f"s_lshl_b32 s{S_T0}, s{S_T0}, 3"); I(f"s_add_u32 s{S_T0}, s{S_T0}, s{S_MI}"); I(f"s_lshl_b32 s{S_OA}, s{S_T0}, 7")
if not opt["hm"]:
    C("passes 1,2: rows 1024*(xcd&1) + 256*(xcd>>1) + 64*hs + 8*wave + (l>>3), line (l&7), then +8")
    I(f"s_and_b32 s{S_T0}, s{S_XCD}, 1"); I(f"s_lshl_b32 s{S_T0}, s{S_T0}, 10")
    I(f"s_lshr_b32 s{S_T1}, s{S_XCD}, 1"); I(f"s_lshl_b32 s{S_T1}, s{S_T1}, 8"); I(f"s_add_u32 s{S_T0}, s{S_T0}, s{S_T1}")
    I(f"s_lshl_b32 s{S_T1}, s{S_SLOT}, 6"); I(f"s_add_u32 s{S_T0}, s{S_T0}, s{S_T1}")
    I(f"s_lshl_b32 s{S_T1}, s{S_WV}, 3"); I(f"s_add_u32 s{S_T0}, s{S_T0}, s{S_T1}")
    I(f"s_lshl_b32 s{S_T0}, s{S_T0}, 11")
    I("v_lshrrev_b32 v11, 3, v2"); I("v_lshlrev_b32 v11, 11, v11"); I("v_and_b32 v12, 7, v2"); I("v_lshl_add_u32 v11, v12, 7, v11")
    I(f"v_add_u32 v11, s{S_T0}, v11")
    I("s_mov_b32 s72, 0"); I("s_mov_b32 s73, 1024")
else:
    C("passes 1,2 (each line once chip-wide, in order of need): 64 rows per helper (lane = row) of tile 4*(xcd&1)+(xcd>>1); wave w: positions w+2, w+10")
    I(f"s_and_b32 s{S_MI}, s{S_XCD}, 1"); I(f"s_lshl_b32 s{S_MI}, s{S_MI}, 2"); I(f"s_lshr_b32 s{S_T1}, s{S_XCD}, 1"); I(f"s_add_u32 s{S_MI}, s{S_MI}, s{S_T1}")
    I(f"s_lshl_b32 s{S_T0}, s{S_MI}, 8"); I(f"s_lshl_b32 s{S_T1}, s{S_SLOT}, 6"); I(f"s_add_u32 s{S_T0}, s{S_T0}, s{S_T1}"); I(f"s_lshl_b32 s{S_T2}, s{S_T0}, 11")
    I("v_lshlrev_b32 v11, 11, v2"); I(f"v_add_u32 v11, s{S_T2}, v11")
    I(f"s_add_u32 s{S_U}, s{S_WV}, 2"); step_of_pos(); I(f"s_lshl_b32 s72, s{S_CS}, 7")
    I(f"s_add_u32 s{S_U}, s{S_WV}, 10"); step_of_pos(); I(f"s_lshl_b32 s73, s{S_CS}, 7")
    I(f"s_cmp_ge_u32 s{S_WV}, 6"); I("s_cselect_b32 s73, 0x40000000, s73")
I("s_waitcnt lgkmcnt(0)")
g.srd(S_X, 4, M*K*2)
stamp_setup()
if opt["hp0"] == 2:
    I(f"s_cmp_lt_u32 s{S_WV}, 4"); I(f"s_cselect_b32 s{S_OA}, 0x40000000, s{S_OA}")
if opt["hp0"]:
    I(f"buffer_load_dword v15, v5, s[{S_X}:{S_X+3}], s{S_OA} offen")
    if opt["hdel"]: I("s_waitcnt vmcnt(0)")
    keep(3)
    I("s_barrier")
else: keep(3)
if opt["hm"] >= 2:
    I(f"s_cmp_lt_u32 s{S_WV}, {opt['hm']}"); I("s_cbranch_scc1 L_h1"); I("s_barrier"); g.LBL("L_h1")
I(f"buffer_load_dword v14, v11, s[{S_X}:{S_X+3}], s72 offen")
if opt["hm"] >= 2:
    I(f"s_cmp_ge_u32 s{S_WV}, {opt['hm']}"); I("s_cbranch_scc1 L_h2"); I("s_barrier"); g.LBL("L_h2")
if opt["hdel"]: I("s_waitcnt vmcnt(0)"); keep(1)
I("s_barrier")
I(f"buffer_load_dword v13, v11, s[{S_X}:{S_X+3}], s73 offen")
if opt["stamps"]:
    if not opt["hdel"]: I("s_waitcnt vmcnt(1)"); keep(1)
    I("s_waitcnt vmcnt(0)"); keep(2); flush_keeps([0, 1, 2, 3])
g.LBL("L_end")
I("s_endpgm")
g.LBL("L_codeend")

out = HEADER + f"""; Launch geometry (generated by my generator script gen24.py)
; @launch grid=({NWG},1,1) block=(512,1,1) lds={LDS_BYTES}
.amdgcn_target "amdgcn-amd-amdhsa--gfx950"
.text
""" + kernel_text(KN, g.text()) + """.section .rodata,"a"
""" + kd(KN, 256, 102)
open(sys.argv[1], "w").write(out)
print(LDS_BYTES, len(g.L))
```

```python
import sys
from asmlib import *
opt = dict(stamps=0, prio=1, barpos=14, ostf=3, cpf=1, hp0=1, hdel=0, npoll=1, epi=1, prepoll=1, smpos=2, lag=0, a0mode=0, lh=2, pdel=1, hx=1, est=1, a0f=0, smL=0, sp=0, hm=1, il=1, tail2=1, eper=2, half=0, bsc=1, actnt=0, sznt=1)
for a in sys.argv[2:]:
    k, v = a.split("="); assert k in opt, k; opt[k] = int(v)
g = Asm(); I = g.I; C = g.C
NWG = 256
STG = 49152; NSTG = 3; BOFF = 32768
CNT = STG * NSTG
LDS_BYTES = CNT + 64
WB_OFF = (1 << 20) if opt["stamps"] else 0
WB_BYTES = 28 * 16 * 16384
FB_OFF = WB_BYTES
FL_OFF = FB_OFF + 28 * 128
WS_BYTES = FL_OFF + 28 * 128
FKEY = 0x9e3779b1
OSTF = {0: "", 1: " sc1", 2: " sc0 sc1", 3: " nt", 4: " sc1 nt"}[opt["ostf"]]
S_X, S_Q, S_S, S_Z, S_ACT, S_OUT, S_WB = 16, 20, 24, 28, 32, 36, 68
S_WV = 44; S_MI = 45; S_NI = 46; S_T0 = 47; S_T1 = 48; S_U = 49; S_T2 = 55
S_OB = 50; S_OA = 51; S_STG = 52; S_MA = 53; S_XCD = 54; S_SLOT = 63; S_P = 66; S_CS = 67; S_PB = 76; S_NP = 77; S_FL = 78; S_PEND = 79; S_SP = 80
S_F = 84
VQ = [128, 56]; VR = [160, 88]; VSCs = [168, 8]; VOs = [32, 32]; VOA = 16
VAD = [(5, 6, 7), (100, 101, 102)]
VFA = 113; VF0 = 114; VCN = 115; VTMP = 116

def kreg(idx): return 100 if idx == 0 else 84 + 2*idx
def stamp_setup():
    if not opt["stamps"]: return
    g.srd(56, 42, 1 << 20)
    I("s_lshl_b32 s62, s2, 3"); I(f"s_add_u32 s62, s62, s{S_WV}"); I("s_lshl_b32 s62, s62, 6")
def keep(idx):
    if opt["stamps"]: I(f"s_memrealtime s[{kreg(idx)}:{kreg(idx)+1}]")
NK = [0]
def keep_if(reg, val, idx):
    if not opt["stamps"]: return
    NK[0] += 1
    I(f"s_cmp_lg_u32 s{reg}, {val}"); I(f"s_cbranch_scc1 L_k{NK[0]}"); keep(idx); g.LBL(f"L_k{NK[0]}")
def flush_keeps(idxs, vt=4):
    if not opt["stamps"]: return
    I("s_waitcnt lgkmcnt(0)")
    for idx in idxs:
        I(f"v_mov_b32 v{vt}, s{kreg(idx)}"); I(f"v_mov_b32 v{vt+1}, 0"); I(f"v_mov_b32 v{vt+2}, s62")
        I(f"buffer_store_dwordx2 v[{vt}:{vt+1}], v{vt+2}, s[56:59], 0 offen offset:{idx*8}")
def next_stage():
    I(f"s_add_u32 s{S_STG}, s{S_STG}, {STG}"); I(f"s_cmp_ge_u32 s{S_STG}, {STG*NSTG}"); I(f"s_cselect_b32 s{S_STG}, 0, s{S_STG}")
def ld_A(n=8):
    for j in range(n):
        if j % 4 == 0:
            if j == 0: I(f"s_add_u32 m0, s{S_STG}, s{S_MA}")
            else:      I("s_add_u32 m0, m0, 4096")
            if j == 8: I(f"s_add_u32 s{S_OA}, s{S_OA}, {64*2048}")
            else: I("s_nop 0")
        I(f"buffer_load_dwordx4 v{VOA+j%8}, s[{S_X}:{S_X+3}], s{S_OA} offen offset:{(j%4)*1024} lds")
def step_of_pos():
    I(f"s_add_u32 s{S_T0}, s{S_U}, s{S_MI}"); I(f"s_add_u32 s{S_CS}, s{S_T0}, 7"); I(f"s_and_b32 s{S_CS}, s{S_CS}, 7")
    I(f"s_and_b32 s{S_T0}, s{S_T0}, 7"); I(f"s_or_b32 s{S_T0}, s{S_T0}, 8")
    I(f"s_cmp_ge_u32 s{S_U}, 9")
    I(f"s_cselect_b32 s{S_CS}, s{S_T0}, s{S_CS}")
def common_setup():
    I(f"s_add_u32 s{S_WB}, s42, {WB_OFF}"); I(f"s_addc_u32 s{S_WB+1}, s43, 0"); I(f"s_mov_b32 s{S_WB+2}, {WS_BYTES}"); I(f"s_mov_b32 s{S_WB+3}, 0x00020000")
    C("hand-off words: chunk published <=> flag == base + KEY; base as found at entry (scalar path)")
    I(f"s_lshl_b32 s{S_T0}, s{S_NI}, 7"); I(f"s_add_u32 s{S_T0}, s{S_T0}, {FB_OFF}")
    I(f"s_add_u32 s82, s{S_WB}, s{S_T0}"); I(f"s_addc_u32 s83, s{S_WB+1}, 0")
    I(f"s_load_dwordx16 s[{S_F}:{S_F+15}], s[82:83], 0")
    I("v_and_b32 v29, 15, v2"); I("v_lshlrev_b32 v29, 2, v29"); I(f"v_add_u32 v29, s{S_T0}, v29")
    I(f"v_add_u32 v{VFA}, {FL_OFF - FB_OFF}, v29")
    I(f"s_lshl_b32 s{S_T0}, s{S_NI}, 4"); I(f"s_add_u32 s{S_T0}, s{S_T0}, s{S_MI}"); I(f"s_lshl_b32 s{S_SP}, s{S_T0}, 14")
    I("v_lshlrev_b32 v25, 4, v2")
    g.srd(S_X, 4, M*K*2)
    stamp_setup()
    C("A DMA offsets: (m0+64b+8j+(l>>3))*2048 + (((l&7)^((4(j&1)+(l>>4))&7))*16) - (j%4)*1024")
    I(f"s_lshl_b32 s{S_T0}, s{S_T2}, 6"); I(f"s_lshl_b32 s{S_T1}, s{S_MI}, 8"); I(f"s_add_u32 s{S_T0}, s{S_T0}, s{S_T1}"); I(f"s_lshl_b32 s{S_T0}, s{S_T0}, 11")
    I("v_lshrrev_b32 v11, 3, v2"); I("v_lshlrev_b32 v11, 11, v11"); I(f"v_add_u32 v11, s{S_T0}, v11")
    I("v_and_b32 v12, 7, v2"); I("v_lshrrev_b32 v13, 4, v2"); I("v_xor_b32 v12, v12, v13"); I("v_xor_b32 v13, 4, v12")
    I("v_lshl_add_u32 v12, v12, 4, v11"); I("v_lshl_add_u32 v13, v13, 4, v11")
    for j in range(8): I(f"v_add_u32 v{VOA+j}, {8*j*2048 - (j%4)*1024}, v{12 + (j&1)}")
    I(f"s_lshl_b32 s{S_MA}, s{S_T2}, 13")
def flags_to_vgpr():
    I("s_waitcnt lgkmcnt(0)")
    I(f"v_mov_b32 v{VF0}, 0")
    for l in range(16): I(f"v_writelane_b32 v{VF0}, s{S_F+l}, {l}")
    I(f"v_add_u32 v{VF0}, {FKEY:#x}, v{VF0}")

keep(0)
I(f"s_cmp_ge_u32 s2, {NWG}")
I("s_cbranch_scc1 L_end")
I("s_load_dwordx4 s[4:7], s[0:1], 0")
I("s_load_dwordx4 s[8:11], s[0:1], 16")
I("s_load_dwordx4 s[12:15], s[0:1], 32")
I("s_load_dwordx2 s[42:43], s[0:1], 56")
I("v_lshrrev_b32 v1, 6, v0")
I("v_and_b32 v2, 63, v0")
I(f"s_and_b32 s{S_XCD}, s2, 7")
I(f"v_readfirstlane_b32 s{S_WV}, v1")
I(f"s_lshr_b32 s{S_SLOT}, s2, 3")
I("v_and_b32 v3, 31, v2"); I("v_lshrrev_b32 v4, 5, v2")
I(f"s_and_b32 s{S_P}, s{S_WV}, 3")
I(f"s_cmp_ge_u32 s{S_SLOT}, 28")
I("s_cbranch_scc1 L_help")
I(f"s_and_b32 s{S_MI}, s{S_XCD}, 1"); I(f"s_lshl_b32 s{S_MI}, s{S_MI}, 2")
I(f"s_and_b32 s{S_T2}, s{S_SLOT}, 3"); I(f"s_add_u32 s{S_MI}, s{S_MI}, s{S_T2}")
I(f"s_lshr_b32 s{S_NI}, s{S_XCD}, 1"); I(f"s_mul_i32 s{S_NI}, s{S_NI}, 7")
I(f"s_lshr_b32 s{S_T2}, s{S_SLOT}, 2"); I(f"s_add_u32 s{S_NI}, s{S_NI}, s{S_T2}")
C("panel columns: two 64-column pieces of the 256-column block ni>>1: pieces (0,3) for even ni, (1,2) for odd ni")
if opt["il"]:
    I(f"s_and_b32 s74, s{S_NI}, 1"); I("s_lshl_b32 s75, s74, 1"); I("s_sub_u32 s75, 2, s75"); I("s_lshl_b32 s75, s75, 4")
    I(f"s_lshr_b32 s{S_T0}, s{S_NI}, 1"); I(f"s_lshl_b32 s{S_T0}, s{S_T0}, 2"); I(f"s_add_u32 s74, s74, s{S_T0}"); I("s_lshl_b32 s74, s74, 4")
else:
    I("s_mov_b32 s75, 0"); I(f"s_lshl_b32 s74, s{S_NI}, 5")
I("v_lshrrev_b32 v14, 4, v3"); I("v_mul_u32_u24 v14, s75, v14"); I("v_add3_u32 v14, v14, v3, s74")
C("v5 = q offset (64*mi+16p+8h)*14336 + 16*quad ; v6 = scale offset ; v7 = act offset (chunk E; L = +8 steps)")
I(f"s_lshl_b32 s{S_T2}, s{S_MI}, 2"); I(f"s_add_u32 s{S_T2}, s{S_T2}, s{S_P}")
I(f"s_mul_i32 s{S_T0}, s{S_T2}, {16*N*4}")
I(f"v_mul_u32_u24 v5, {8*N*4}, v4"); I("v_lshl_add_u32 v5, v14, 4, v5"); I(f"v_add_u32 v5, s{S_T0}, v5")
I(f"s_lshr_b32 s{S_T0}, s{S_T2}, 1"); I(f"s_mul_i32 s{S_T0}, s{S_T0}, {N*2}")
I("v_lshlrev_b32 v6, 3, v14"); I(f"v_add_u32 v6, s{S_T0}, v6")
I(f"s_lshl_b32 s{S_T0}, s{S_T2}, 5"); I("v_lshlrev_b32 v7, 4, v4"); I(f"v_add_u32 v7, s{S_T0}, v7")
C("v8 = image offset in chunk: (2p+h)*2048 + (i&1)*1024 + (((i>>1)^(4*(i&1)))*16)  (+ c*256)")
I(f"s_cmp_lt_u32 s{S_WV}, 4")
I("s_cbranch_scc1 L_cons")

I("s_waitcnt lgkmcnt(0)")
g.srd(S_Q, 6, K*N*4)
Q = []
def ldq(st, e):
    I(f"s_mov_b32 s{S_T0}, {(e + 512*st)*N*4}")
    I(f"buffer_load_dwordx4 v[{VQ[st]+4*e}:{VQ[st]+4*e+3}], v{VAD[st][0]}, s[{S_Q}:{S_Q+3}], s{S_T0} offen nt"); Q.append(("q", st, e))
def small(st):
    R = VR[st]
    I(f"s_mov_b32 s{S_T0}, {st*16*N*2}")
    I(f"buffer_load_dwordx2 v[{R}:{R+1}], v{VAD[st][1]}, s[{S_S}:{S_S+3}], s{S_T0} offen" + (" nt" if opt["sznt"] else ""))
    I(f"buffer_load_dwordx2 v[{R+2}:{R+3}], v{VAD[st][1]}, s[{S_Z}:{S_Z+3}], s{S_T0} offen" + (" nt" if opt["sznt"] else ""))
    I(f"buffer_load_dwordx4 v[{R+4}:{R+7}], v{VAD[st][2]}, s[{S_ACT}:{S_ACT+3}], 0 offen offset:{st*1024}" + (" nt" if opt["actnt"] else "")); Q.extend([("s", st, 0)]*3)
def wait_for(pred):
    last = max([i for i, t in enumerate(Q) if pred(t)], default=-1)
    if last >= 0: I(f"s_waitcnt vmcnt({len(Q)-1-last})")
    del Q[:last+1]
for e in range(8):
    if e == opt["smpos"]:
        g.srd(S_S, 8, 32*N*2); g.srd(S_Z, 10, 32*N*2); g.srd(S_ACT, 12, K*2); small(0)
    ldq(0, e)
I("s_barrier")
I(f"s_sub_u32 s{S_T2}, s{S_WV}, 5"); I(f"s_lshl_b32 s{S_T2}, s{S_T2}, 1"); I(f"s_and_b32 s{S_T2}, s{S_T2}, 2")
common_setup()
I(f"s_lshl_b32 s{S_T0}, s{S_NI}, 18"); I(f"v_add_u32 v24, s{S_T0}, v25")
C("v8 = image offset in chunk: (2p+h)*2048 + (i&1)*1024 + (((i>>1)^(4*(i&1)))*16)  (+ c*256)")
I(f"s_lshl_b32 s{S_T0}, s{S_P}, 12")
I("v_lshlrev_b32 v8, 11, v4"); I(f"v_add_u32 v8, s{S_T0}, v8")
I("v_and_b32 v9, 1, v3"); I("v_lshl_add_u32 v8, v9, 10, v8"); I("v_lshlrev_b32 v9, 2, v9")
I("v_lshrrev_b32 v10, 1, v3"); I("v_xor_b32 v10, v10, v9"); I("v_lshl_add_u32 v8, v10, 4, v8")
flags_to_vgpr()
def unpack(st):
    R = VR[st]; VSC = VSCs[st]
    wait_for(lambda t: t[0] == "s" and t[1] == st)
    for d in range(4):
        I(f"v_lshlrev_b32 v{VSC+2*d}, 16, v{R+d}"); I(f"v_and_b32 v{VSC+2*d+1}, 0xffff0000, v{R+d}")
    for d in range(4):
        I(f"v_lshlrev_b32 v{VSC+8+2*d}, 16, v{R+4+d}"); I(f"v_and_b32 v{VSC+9+2*d}, 0xffff0000, v{R+4+d}")
    for T in range(4): I(f"v_mul_f32 v{VSC+4+T}, -v{VSC+4+T}, v{VSC+T}")
def conv_row(st, e, after_wait=None):
    wait_for(lambda t: t == ("q", st, e))
    if after_wait: after_wait()
    q = VQ[st] + 4*e; o = VOs[st]; VSC = VSCs[st]
    for c in range(4): I(f"v_cvt_f32_i32 v{q+c}, v{q+c}")
    for c in range(4): I(f"v_fma_f32 v{q+c}, v{q+c}, v{VSC+c}, v{VSC+4+c}")
    for c in range(4): I(f"v_mul_f32 v{q+c}, v{q+c}, v{VSC+8+e}")
    if e & 1:
        for c in range(4): I(f"v_cvt_pk_bf16_f32 v{o+4*c+e//2}, v{q-4+c}, v{q+c}")
C("dequantise: w = bf16(((float)q*s - z*s) * a[k]), row by row as the loads land")
VO = 32
I(f"v_mov_b32 v{VCN}, {CNT}"); I(f"v_mov_b32 v{VTMP}, 1")
unpack(0)
for e in range(8): conv_row(0, e)
for c in range(4 if opt["est"] else 0): I(f"buffer_store_dwordx4 v[{VO+4*c}:{VO+4*c+3}], v8, s[{S_WB}:{S_WB+3}], s{S_SP} offen offset:{c*256} sc1")
for c in range(4): I(f"ds_write_b128 v8, v[{VO+4*c}:{VO+4*c+3}] offset:{BOFF + c*256}")
I("s_waitcnt lgkmcnt(0)")
keep(1)
I("s_barrier")
I("s_waitcnt vmcnt(0)")
keep(2)
I("s_mov_b64 exec, 1")
I(f"ds_add_rtn_u32 v{VTMP+1}, v{VCN}, v{VTMP}")
I("s_waitcnt lgkmcnt(0)")
I(f"v_readfirstlane_b32 s{S_T0}, v{VTMP+1}")
I(f"s_cmp_lg_u32 s{S_T0}, 3")
I("s_cbranch_scc1 L_nf0")
I(f"s_lshl_b32 s{S_T1}, 1, s{S_MI}")
I(f"s_mov_b32 exec_lo, s{S_T1}")
I(f"buffer_store_dword v{VF0}, v{VFA}, s[{S_WB}:{S_WB+3}], 0 offen sc1")
g.LBL("L_nf0")
I("s_mov_b64 exec, -1")
if opt["pdel"]: I("s_barrier")
I(f"s_mov_b32 s{S_STG}, {STG}")
I(f"s_mov_b32 s{S_U}, 2")
I(f"s_cmp_eq_u32 s{S_WV}, 4")
I("s_cbranch_scc1 L_bload")
I(f"s_cmp_eq_u32 s{S_WV}, 7")
I("s_cbranch_scc1 L_copy")
C("waves 5,6: A tiles")
I(f"s_lshl_b32 s{S_OA}, s{S_MI}, 7"); I(f"s_add_u32 s{S_OA}, s{S_OA}, 1024"); ld_A(16)
g.LBL("L_aloop")
step_of_pos(); next_stage(); I(f"s_lshl_b32 s{S_OA}, s{S_CS}, 7"); ld_A(16)
I("s_waitcnt vmcnt(16)")
I("s_barrier")
I(f"s_add_u32 s{S_U}, s{S_U}, 1")
I(f"s_cmp_lt_u32 s{S_U}, 16")
I("s_cbranch_scc1 L_aloop")
I("s_waitcnt vmcnt(0)")
I("s_barrier")
flush_keeps([0, 1, 2])
I("s_endpgm")

g.LBL("L_copy")
C("wave 7: copy the L image (stage 1, complete at B_1) out to ws, publish it, end")
I(f"v_add_u32 v26, {STG + BOFF}, v25")
I(f"s_add_u32 s{S_SP}, s{S_SP}, {8*16384}")
I("s_barrier")
for j in range(16): I(f"ds_read_b128 v[{128+4*j}:{131+4*j}], v26 offset:{j*1024}")
I("s_waitcnt lgkmcnt(0)")
I("s_barrier")
for jj in range(4):
    for j in range(4): I(f"buffer_store_dwordx4 v[{128+16*jj+4*j}:{131+16*jj+4*j}], v25, s[{S_WB}:{S_WB+3}], s{S_SP} offen offset:{j*1024} sc1")
    I(f"s_add_u32 s{S_SP}, s{S_SP}, 4096")
    if jj == 1: I("s_barrier")
I("s_barrier")
I("s_waitcnt vmcnt(0)")
I(f"s_lshl_b32 s{S_T1}, 256, s{S_MI}")
I(f"s_mov_b32 exec_lo, s{S_T1}"); I("s_mov_b32 exec_hi, 0")
I(f"buffer_store_dword v{VF0}, v{VFA}, s[{S_WB}:{S_WB+3}], 0 offen sc1")
I("s_mov_b64 exec, -1")
flush_keeps([0, 1, 2])
I("s_endpgm")

g.LBL("L_bload")
C("wave 4: S_U next position to issue, S_PB last barrier passed, S_FL mask of published steps")
I(f"s_mov_b32 s{S_PB}, 0"); I(f"s_mov_b32 s{S_FL}, 0"); I(f"s_mov_b32 s{S_NP}, 0")
if opt["sp"]:
    C("first looks at the flags go through the scalar path (they do not queue behind the vector loads)")
    step_of_pos()
    I("s_mov_b32 s81, 0")
    I("s_mov_b64 exec, 0xffff")
    g.LBL("L_spoll")
    I(f"s_load_dwordx16 s[20:35], s[82:83], {FL_OFF - FB_OFF} glc")
    I("s_waitcnt lgkmcnt(0)")
    for l in range(8): I(f"v_writelane_b32 v28, s{20+l}, {l}")
    I(f"v_cmp_eq_u32 vcc, v28, v{VF0}")
    I(f"s_and_b32 s{S_FL}, vcc_lo, 0xff")
    I(f"s_bitcmp1_b32 s{S_FL}, s{S_CS}")
    I("s_cbranch_scc1 L_spx")
    I("s_add_u32 s81, s81, 1"); I(f"s_cmp_lt_u32 s81, {opt['sp']}"); I("s_cbranch_scc1 L_spoll")
    g.LBL("L_spx")
    I("s_mov_b64 exec, -1")
    pass
g.LBL("L_sm")
I(f"s_mov_b32 s{S_PEND}, 0")
I(f"s_cmp_ge_u32 s{S_U}, 16")
I("s_cbranch_scc1 L_trybar")
step_of_pos()
I(f"s_bitcmp1_b32 s{S_FL}, s{S_CS}")
I("s_cbranch_scc0 L_dopoll")
I(f"s_add_u32 s{S_T0}, s{S_PB}, 2")
I(f"s_cmp_gt_u32 s{S_U}, s{S_T0}")
I("s_cbranch_scc1 L_trybar")
keep_if(S_U, 2, 5); keep_if(S_U, 8, 6)
next_stage()
I(f"s_lshl_b32 s{S_OB}, s{S_CS}, 14")
for jj in range(4):
    I(f"s_add_u32 m0, s{S_STG}, {BOFF + jj*4096}")
    if jj: I(f"s_add_u32 s{S_OB}, s{S_OB}, 4096")
    else: I("s_nop 0")
    for j in range(4): I(f"buffer_load_dwordx4 v24, s[{S_WB}:{S_WB+3}], s{S_OB} offen offset:{j*1024}" + (" sc1" if opt["bsc"] else "") + " lds")
I(f"s_add_u32 s{S_U}, s{S_U}, 1")
I("s_branch L_sm")
g.LBL("L_dopoll")
I("s_mov_b64 exec, 0xffff")
I(f"buffer_load_dword v28, v{VFA}, s[{S_WB}:{S_WB+3}], 0 offen sc1")
I(f"s_add_u32 s{S_NP}, s{S_NP}, 1")
I(f"s_mov_b32 s{S_PEND}, 1")
if opt["npoll"]:
    I(f"s_cmp_le_u32 s{S_NP}, {opt['npoll']}")
    I("s_cbranch_scc1 L_nobar")
g.LBL("L_trybar")
I(f"s_sub_u32 s{S_T0}, s{S_U}, s{S_PB}")
I(f"s_cmp_le_u32 s{S_T0}, 1")
I("s_cbranch_scc1 L_nobar")
I(f"s_lshl_b32 s{S_T0}, s{S_T0}, 1"); I(f"s_add_u32 s{S_T0}, s{S_T0}, s{S_PEND}")
I(f"s_cmp_eq_u32 s{S_T0}, 6"); I("s_cbranch_scc1 L_w16")
I(f"s_cmp_eq_u32 s{S_T0}, 7"); I("s_cbranch_scc1 L_w17")
I(f"s_cmp_eq_u32 s{S_T0}, 5"); I("s_cbranch_scc1 L_w1")
I("s_waitcnt vmcnt(0)")
g.LBL("L_w1")
I("s_waitcnt vmcnt(1)")
g.LBL("L_w16")
I("s_waitcnt vmcnt(16)")
g.LBL("L_w17")
I("s_waitcnt vmcnt(17)")
I("s_barrier")
I(f"s_add_u32 s{S_PB}, s{S_PB}, 1")
I(f"s_cmp_ge_u32 s{S_PB}, 15")
I("s_cbranch_scc1 L_bdone")
g.LBL("L_nobar")
I(f"s_cmp_eq_u32 s{S_PEND}, 0")
I("s_cbranch_scc1 L_sm")
I(f"s_cmp_lt_u32 s{S_NP}, 0x40000")
I("s_cbranch_scc1 L_waitpoll")
I(f"s_mov_b32 s{S_FL}, 0xffff")
g.LBL("L_waitpoll")
I("s_waitcnt vmcnt(0)")
g.LBL("L_gotpoll")
I(f"v_cmp_eq_u32 vcc, v28, v{VF0}")
I(f"s_or_b32 s{S_FL}, s{S_FL}, vcc_lo")
I("s_mov_b64 exec, -1")
I("s_branch L_sm")
g.LBL("L_bdone")
C("every sharer has published, hence read the base words: re-arm this WG's two words (base := flag value)")
I(f"s_lshl_b32 s{S_T1}, 0x101, s{S_MI}")
I(f"s_mov_b32 exec_lo, s{S_T1}"); I("s_mov_b32 exec_hi, 0")
I(f"buffer_store_dword v{VF0}, v29, s[{S_WB}:{S_WB+3}], 0 offen sc1")
I("s_mov_b64 exec, -1")
if opt["stamps"]: I("s_waitcnt lgkmcnt(0)"); I(f"s_mov_b32 s98, s{S_NP}" if not opt["sp"] else "s_mov_b32 s98, s81")
flush_keeps([0, 1, 2, 5, 6, 7])
I("s_endpgm")

g.LBL("L_cons")
I("v_mov_b32 v14, 0"); I(f"v_mov_b32 v{VCN}, {CNT}")
I(f"ds_write_b32 v{VCN}, v14")
I("v_mov_b32 v100, v5"); I("v_mov_b32 v101, v6"); I("v_mov_b32 v102, v7")
if opt["half"]:
    I(f"s_and_b32 s{S_T0}, s{S_MI}, 1"); I(f"s_lshl_b32 s{S_T0}, s{S_T0}, 30"); I(f"v_add_u32 v100, s{S_T0}, v100")
I(f"s_lshl_b32 s{S_T0}, s{S_P}, 12")
I("v_lshlrev_b32 v8, 11, v4"); I(f"v_add_u32 v8, s{S_T0}, v8")
I("v_and_b32 v9, 1, v3"); I("v_lshl_add_u32 v8, v9, 10, v8"); I("v_lshlrev_b32 v9, 2, v9")
I("v_lshrrev_b32 v10, 1, v3"); I("v_xor_b32 v10, v10, v9"); I("v_lshl_add_u32 v8, v10, 4, v8")
I(f"v_add_u32 v103, {STG}, v8")
C("A DMA offsets")
I(f"s_lshl_b32 s{S_T0}, s{S_P}, 6"); I(f"s_lshl_b32 s{S_T1}, s{S_MI}, 8"); I(f"s_add_u32 s{S_T0}, s{S_T0}, s{S_T1}"); I(f"s_lshl_b32 s{S_T0}, s{S_T0}, 11")
I("v_lshrrev_b32 v11, 3, v2"); I("v_lshlrev_b32 v11, 11, v11"); I(f"v_add_u32 v11, s{S_T0}, v11")
I("v_and_b32 v12, 7, v2"); I("v_lshrrev_b32 v13, 4, v2"); I("v_xor_b32 v12, v12, v13"); I("v_xor_b32 v13, 4, v12")
I("v_lshl_add_u32 v12, v12, 4, v11"); I("v_lshl_add_u32 v13, v13, 4, v11")
for j in range(8): I(f"v_add_u32 v{VOA+j}, {8*j*2048 - (j%4)*1024}, v{12 + (j&1)}")
I(f"s_lshl_b32 s{S_MA}, s{S_P}, 13")
I("s_waitcnt lgkmcnt(0)")
g.srd(S_X, 4, M*K*2); g.srd(S_Q, 6, K*N*4); g.srd(S_S, 8, 32*N*2); g.srd(S_Z, 10, 32*N*2); g.srd(S_ACT, 12, K*2)
I(f"s_mov_b32 s{S_STG}, 0"); I(f"s_lshl_b32 s{S_OA}, s{S_MI}, 7")
I("s_barrier")
Q[:] = []
LH = opt["lh"]
if opt["a0f"]: ld_A(); Q.extend([("A", 0, 0)]*8)
if opt["smL"]: small(1)
for e in range(LH): ldq(1, e)
if not opt["a0f"]: ld_A(); Q.extend([("A", 0, 0)]*8)
stamp_setup()
VA0 = 104; VA = 108; VOUT = 112
I("v_lshrrev_b32 v3, 4, v2"); I("v_and_b32 v4, 15, v2")
I("v_lshlrev_b32 v5, 7, v4"); I(f"v_add_u32 v5, s{S_MA}, v5"); I("v_bfe_u32 v6, v4, 1, 3")
for t in range(2):
    I(f"v_add_u32 v10, {4*t}, v3"); I("v_xor_b32 v10, v10, v6"); I(f"v_lshl_add_u32 v{VA0+t}, v10, 4, v5")
I("v_lshlrev_b32 v10, 11, v3"); I(f"v_add_u32 v10, {BOFF}, v10")
I(f"v_lshl_add_u32 v{VA0+2}, v4, 4, v10")
I("v_xor_b32 v11, 4, v4"); I(f"v_lshl_add_u32 v{VA0+3}, v11, 4, v10")
for t in range(4): I(f"v_mov_b32 v{VA+t}, v{VA0+t}")
I(f"s_lshl_b32 s{S_T0}, s{S_P}, 6"); I(f"s_lshl_b32 s{S_T1}, s{S_MI}, 8"); I(f"s_add_u32 s{S_T0}, s{S_T0}, s{S_T1}")
I(f"s_mul_i32 s{S_T0}, s{S_T0}, {N*2}"); I(f"s_lshl_b32 s{S_T1}, s74, 3"); I(f"s_add_u32 s{S_T0}, s{S_T0}, s{S_T1}")
I(f"v_mul_u32_u24 v10, {4*N*2}, v3"); I("v_lshl_add_u32 v10, v4, 4, v10")
I("v_lshrrev_b32 v11, 3, v4"); I("v_mul_u32_u24 v11, s75, v11"); I("v_lshl_add_u32 v10, v11, 3, v10"); I(f"v_add_u32 v{VOUT}, s{S_T0}, v10")
g.srd(S_OUT, 14, M*N*2)
ACC = 128
def acc(a, T): return ACC + (a * 8 + T) * 4
FS = [8, 56]
def fA(s, a): return FS[s] + 4 * a
def fB(s, T): return FS[s] + 16 + 4 * T
def rdA(s, a, t): I(f"ds_read_b128 v[{fA(s,a)}:{fA(s,a)+3}], v{VA+t} offset:{a*2048}")
def rdB(s, T, t): I(f"ds_read_b128 v[{fB(s,T)}:{fB(s,T)+3}], v{VA+2+(T>>2)} offset:{t*8192 + T*256}")
def mfma(s, a, T, first=False):
    d = acc(a, T)
    I(f"v_mfma_f32_16x16x32_bf16 v[{d}:{d+3}], v[{fA(s,a)}:{fA(s,a)+3}], v[{fB(s,T)}:{fB(s,T)+3}], " + ("0" if first else f"v[{d}:{d+3}]"))
MORD = []
for a in range(4): MORD += [(a, T) for T in (range(8) if a % 2 == 0 else range(7, -1, -1))]
def reads(s, t):
    return [lambda: rdA(s,0,t)] + [(lambda T: (lambda: rdB(s,T,t)))(T) for T in range(8)] + [(lambda a: (lambda: rdA(s,a,t)))(a) for a in range(1,4)]
BP = opt["barpos"]
def half0(first):
    I("s_waitcnt lgkmcnt(0)")
    rd = reads(1, 1)
    for idx, (a, T) in enumerate(MORD):
        mfma(0, a, T, first)
        if idx < len(rd): rd[idx]()
        if idx == 16: next_stage()
        if idx == 18: I(f"s_add_u32 s{S_U}, s{S_U}, 1")
        if idx == 20:
            for tt in range(4): I(f"v_add_u32 v{VA+tt}, s{S_STG}, v{VA0+tt}")
I("s_barrier")
if not opt["smL"]: small(1)
for e in range(LH, 8): ldq(1, e)
wait_for(lambda t: t[0] == "A")
keep(1)
if opt["stamps"]: I("s_memtime s[64:65]")
C("position 0 with one fragment set (the other registers receive the L chunk)")
for t in range(2):
    for r in reads(0, t): r()
    I("s_waitcnt lgkmcnt(0)")
    for (a, T) in MORD: mfma(0, a, T, t == 0)
if opt["pdel"]: I("s_barrier")
unpack(1)
for e in range(8): conv_row(1, e)
for c in range(4): I(f"ds_write_b128 v103, v[{VO+4*c}:{VO+4*c+3}] offset:{BOFF + c*256}")
keep(0)
if opt["prio"]: I(f"s_setprio {opt['prio']}")
I(f"s_mov_b32 s{S_U}, 1"); I(f"s_mov_b32 s{S_STG}, {STG}")
for tt in range(4): I(f"v_add_u32 v{VA+tt}, s{S_STG}, v{VA0+tt}")
I("s_waitcnt lgkmcnt(0)")
I("s_barrier")
keep(4)
for r in reads(0, 0): r()
if not opt["tail2"]:
    g.LBL("L_cloop")
    half0(False)
    I("s_waitcnt lgkmcnt(0)")
    rd = reads(0, 0)
    for idx, (a, T) in enumerate(MORD):
        mfma(1, a, T)
        if idx == BP:
            I(f"s_cmp_ge_u32 s{S_U}, 16")
            I("s_cbranch_scc1 L_ctail")
            I("s_barrier")
            keep_if(S_U, 2, 5); keep_if(S_U, 9, 7)
        if idx > BP and idx - BP - 1 < len(rd): rd[idx-BP-1]()
    I("s_branch L_cloop")
    g.LBL("L_ctail")
    def epi_ops(a):
        ops = []
        for r in range(4):
            d = 8 + 4 * ((a*4 + r) % 12)
            for p in range(4): ops.append(f"v_cvt_pk_bf16_f32 v{d+p}, v{acc(a,2*p)+r}, v{acc(a,2*p+1)+r}")
            ops.append(f"s_mov_b32 s{S_T0}, {(16*a+r)*N*2}")
            ops.append(f"buffer_store_dwordx4 v[{d}:{d+3}], v{VOUT}, s[{S_OUT}:{S_OUT+3}], s{S_T0} offen{OSTF}")
        return ops
    pend = []; done_a = set()
    for idx, (a, T) in enumerate(MORD):
        if idx <= BP: continue
        mfma(1, a, T)
        if opt["epi"]:
            for ap in range(3):
                if ap not in done_a and idx >= 8*ap + 7 + 8:
                    pend += epi_ops(ap); done_a.add(ap)
            for o in pend[:3]: I(o)
            pend = pend[3:]
    keep(2)
    if opt["stamps"]: I("s_memtime s[60:61]")
    for o in pend: I(o)
    rest = [a for a in range(4) if a not in done_a]
    for a in rest[:-1]:
        for o in epi_ops(a): I(o)
    I("s_nop 7")
    for o in epi_ops(rest[-1]): I(o)
else:
    g.LBL("L_cloop")
    half0(False)
    I("s_waitcnt lgkmcnt(0)")
    rd = reads(0, 0)
    for idx, (a, T) in enumerate(MORD):
        mfma(1, a, T)
        if idx == BP:
            I("s_barrier")
            keep_if(S_U, 2, 5); keep_if(S_U, 9, 7)
            I(f"s_cmp_ge_u32 s{S_U}, 14")
            I("s_cbranch_scc1 L_ctail")
        if idx > BP and idx - BP - 1 < len(rd): rd[idx-BP-1]()
    I("s_branch L_cloop")
    g.LBL("L_ctail")
    C("last two positions: row tiles 0,1 first (both positions), then row tiles 2,3 while tiles 0,1 are stored")
    VB = 116
    LQ = []
    def t_read(kind, s_, slot, idx_, pos, t):
        base = VA if pos == 0 else VB
        if kind == "A": I(f"ds_read_b128 v[{fA(s_,slot)}:{fA(s_,slot)+3}], v{base+t} offset:{idx_*2048}")
        else: I(f"ds_read_b128 v[{fB(s_,idx_)}:{fB(s_,idx_)+3}], v{base+2+(idx_>>2)} offset:{t*8192 + idx_*256}")
        LQ.append((kind, s_, slot if kind == "A" else idx_))
    def t_need(ids):
        last = max([i for i, x in enumerate(LQ) if x in ids], default=-1)
        if last >= 0:
            I(f"s_waitcnt lgkmcnt({len(LQ)-1-last})"); del LQ[:last+1]
    subs = [(ap, pos, t) for ap in range(2) for pos in range(2) for t in range(2)]
    def sub_reads(k):
        ap, pos, t = subs[k]; s_ = k & 1
        return [("A", s_, 0, 2*ap, pos, t)] + [("B", s_, 0, T, pos, t) for T in range(8)] + [("A", s_, 1, 2*ap+1, pos, t)]
    TMP = [fA(0,2), fA(0,3), fA(1,2), fA(1,3), 120, 124]
    ne = [0]
    def epi_ops(a):
        ops = []
        for r in range(4):
            d = TMP[ne[0] % len(TMP)]; ne[0] += 1
            for p in range(4): ops.append(f"v_cvt_pk_bf16_f32 v{d+p}, v{acc(a,2*p)+r}, v{acc(a,2*p+1)+r}")
            ops.append(f"s_mov_b32 s{S_T0}, {(16*a+r)*N*2}")
            ops.append(f"buffer_store_dwordx4 v[{d}:{d+3}], v{VOUT}, s[{S_OUT}:{S_OUT+3}], s{S_T0} offen{OSTF}")
        return ops
    C("rest of position 13")
    nxt = sub_reads(0)
    for idx, (a, T) in enumerate(MORD):
        if idx <= BP: continue
        mfma(1, a, T)
        if nxt: t_read(*nxt.pop(0))
        if idx == 28: next_stage()
        if idx == 30:
            for tt in range(4): I(f"v_add_u32 v{VB+tt}, s{S_STG}, v{VA0+tt}")
    pend = []
    for k, (ap, pos, t) in enumerate(subs):
        s_ = k & 1
        nxt = sub_reads(k+1) if k < 7 else []
        order = [(0, T) for T in range(8)] + [(1, T) for T in range(7, -1, -1)]
        for idx, (sl, T) in enumerate(order):
            t_need([("A", s_, sl), ("B", s_, T)])
            d = acc(2*ap+sl, T)
            I(f"v_mfma_f32_16x16x32_bf16 v[{d}:{d+3}], v[{fA(s_,sl)}:{fA(s_,sl)+3}], v[{fB(s_,T)}:{fB(s_,T)+3}], v[{d}:{d+3}]")
            if k == 1 and idx == 0: I("s_barrier")
            if nxt and idx >= 1: t_read(*nxt.pop(0))
            if k == 4 and idx == 0: pend += epi_ops(0)
            if k == 4 and idx == 8: pend += epi_ops(1)
            if k == 7 and idx == 15: pend += epi_ops(2)
            n = opt["eper"] if (k >= 4 and not nxt) else (1 if k >= 4 else 0)
            for o in pend[:n]: I(o)
            pend = pend[n:]
    keep(2)
    if opt["stamps"]: I("s_memtime s[60:61]")
    for o in pend: I(o)
    I("s_nop 7")
    for o in epi_ops(3): I(o)
if opt["stamps"]:
    I("s_waitcnt vmcnt(0)"); keep(3); I("s_waitcnt lgkmcnt(0)")
    I("s_sub_u32 s96, s60, s64")
    flush_keeps([0, 1, 2, 3, 4, 5, 6, 7])
I("s_endpgm")

g.LBL("L_help")
if opt["cpf"]:
    C("pull the kernel's code into this die's L2 (range-checked)")
    I("s_getpc_b64 s[56:57]")
    g.LBL("L_pc")
    I(f"s_sub_u32 s56, s56, L_pc-{KN}"); I("s_subb_u32 s57, s57, 0")
    I(f"s_mov_b32 s58, L_codeend-{KN}"); I("s_mov_b32 s59, 0x00020000")
    I("v_lshlrev_b32 v10, 7, v0")
    if opt["cpf"] == 2:
        I(f"s_cmp_eq_u32 s{S_SLOT}, 28"); I("s_cselect_b32 s58, s58, 0")
    if opt["cpf"] == 3:
        C("each of the die's four helpers takes every fourth line")
        I("v_lshlrev_b32 v10, 9, v0"); I(f"s_and_b32 s{S_T0}, s{S_SLOT}, 3"); I(f"s_lshl_b32 s{S_T0}, s{S_T0}, 7"); I(f"v_add_u32 v10, s{S_T0}, v10")
    I("buffer_load_dword v9, v10, s[56:59], 0 offen")
I(f"s_sub_u32 s{S_SLOT}, s{S_SLOT}, 28")
C("pass 0: tile mi=4*(xcd&1)+hs, rows 64*(wave&3)+lane, line mi (waves 0-3) / 8+mi (waves 4-7)")
I(f"s_and_b32 s{S_MI}, s{S_XCD}, 1"); I(f"s_lshl_b32 s{S_MI}, s{S_MI}, 2"); I(f"s_add_u32 s{S_MI}, s{S_MI}, s{S_SLOT}")
I(f"s_lshl_b32 s{S_T0}, s{S_MI}, 8"); I(f"s_lshl_b32 s{S_T1}, s{S_P}, 6"); I(f"s_add_u32 s{S_T0}, s{S_T0}, s{S_T1}")
I(f"s_lshl_b32 s{S_T0}, s{S_T0}, 11")
I("v_lshlrev_b32 v5, 11, v2"); I(f"v_add_u32 v5, s{S_T0}, v5")
I(f"s_lshr_b32 s{S_T0}, s{S_WV}, 2"); I(f"s_lshl_b32 s{S_T0}, s{S_T0}, 3"); I(f"s_add_u32 s{S_T0}, s{S_T0}, s{S_MI}"); I(f"s_lshl_b32 s{S_OA}, s{S_T0}, 7")
if not opt["hm"]:
    C("passes 1,2: rows 1024*(xcd&1) + 256*(xcd>>1) + 64*hs + 8*wave + (l>>3), line (l&7), then +8")
    I(f"s_and_b32 s{S_T0}, s{S_XCD}, 1"); I(f"s_lshl_b32 s{S_T0}, s{S_T0}, 10")
    I(f"s_lshr_b32 s{S_T1}, s{S_XCD}, 1"); I(f"s_lshl_b32 s{S_T1}, s{S_T1}, 8"); I(f"s_add_u32 s{S_T0}, s{S_T0}, s{S_T1}")
    I(f"s_lshl_b32 s{S_T1}, s{S_SLOT}, 6"); I(f"s_add_u32 s{S_T0}, s{S_T0}, s{S_T1}")
    I(f"s_lshl_b32 s{S_T1}, s{S_WV}, 3"); I(f"s_add_u32 s{S_T0}, s{S_T0}, s{S_T1}")
    I(f"s_lshl_b32 s{S_T0}, s{S_T0}, 11")
    I("v_lshrrev_b32 v11, 3, v2"); I("v_lshlrev_b32 v11, 11, v11"); I("v_and_b32 v12, 7, v2"); I("v_lshl_add_u32 v11, v12, 7, v11")
    I(f"v_add_u32 v11, s{S_T0}, v11")
    I("s_mov_b32 s72, 0"); I("s_mov_b32 s73, 1024")
else:
    C("passes 1,2 (each line once chip-wide, in order of need): 64 rows per helper (lane = row) of tile 4*(xcd&1)+(xcd>>1); wave w: positions w+2, w+10")
    I(f"s_and_b32 s{S_MI}, s{S_XCD}, 1"); I(f"s_lshl_b32 s{S_MI}, s{S_MI}, 2"); I(f"s_lshr_b32 s{S_T1}, s{S_XCD}, 1"); I(f"s_add_u32 s{S_MI}, s{S_MI}, s{S_T1}")
    I(f"s_lshl_b32 s{S_T0}, s{S_MI}, 8"); I(f"s_lshl_b32 s{S_T1}, s{S_SLOT}, 6"); I(f"s_add_u32 s{S_T0}, s{S_T0}, s{S_T1}"); I(f"s_lshl_b32 s{S_T2}, s{S_T0}, 11")
    I("v_lshlrev_b32 v11, 11, v2"); I(f"v_add_u32 v11, s{S_T2}, v11")
    I(f"s_add_u32 s{S_U}, s{S_WV}, 2"); step_of_pos(); I(f"s_lshl_b32 s72, s{S_CS}, 7")
    I(f"s_add_u32 s{S_U}, s{S_WV}, 10"); step_of_pos(); I(f"s_lshl_b32 s73, s{S_CS}, 7")
    I(f"s_cmp_ge_u32 s{S_WV}, 6"); I("s_cselect_b32 s73, 0x40000000, s73")
I("s_waitcnt lgkmcnt(0)")
g.srd(S_X, 4, M*K*2)
stamp_setup()
if opt["hp0"] == 2:
    I(f"s_cmp_lt_u32 s{S_WV}, 4"); I(f"s_cselect_b32 s{S_OA}, 0x40000000, s{S_OA}")
if opt["hp0"]:
    I(f"buffer_load_dword v15, v5, s[{S_X}:{S_X+3}], s{S_OA} offen")
    if opt["hdel"]: I("s_waitcnt vmcnt(0)")
    keep(3)
    I("s_barrier")
else: keep(3)
if opt["hm"] >= 2:
    I(f"s_cmp_lt_u32 s{S_WV}, {opt['hm']}"); I("s_cbranch_scc1 L_h1"); I("s_barrier"); g.LBL("L_h1")
I(f"buffer_load_dword v14, v11, s[{S_X}:{S_X+3}], s72 offen")
if opt["hm"] >= 2:
    I(f"s_cmp_ge_u32 s{S_WV}, {opt['hm']}"); I("s_cbranch_scc1 L_h2"); I("s_barrier"); g.LBL("L_h2")
if opt["hdel"]: I("s_waitcnt vmcnt(0)"); keep(1)
I("s_barrier")
I(f"buffer_load_dword v13, v11, s[{S_X}:{S_X+3}], s73 offen")
if opt["stamps"]:
    if not opt["hdel"]: I("s_waitcnt vmcnt(1)"); keep(1)
    I("s_waitcnt vmcnt(0)"); keep(2); flush_keeps([0, 1, 2, 3])
g.LBL("L_end")
I("s_endpgm")
g.LBL("L_codeend")

out = HEADER + f"""; Launch geometry (generated by my generator script gen25.py)
; @launch grid=({NWG},1,1) block=(512,1,1) lds={LDS_BYTES}
.amdgcn_target "amdgcn-amd-amdhsa--gfx950"
.text
""" + kernel_text(KN, g.text()) + """.section .rodata,"a"
""" + kd(KN, 256, 102)
open(sys.argv[1], "w").write(out)
print(LDS_BYTES, len(g.L))
```

```python
import sys
from asmlib import *
opt = dict(stamps=0, prio=1, barpos=14, ostf=3, cpf=1, hp0=1, hdel=0, npoll=1, epi=1, prepoll=1, smpos=2, lag=0, a0mode=0, lh=4, pdel=1, hx=1, est=1, a0f=0, smL=0, sp=0, hm=1, il=1, tail2=1, R=3, ph=0, merge=1, eper=2, half=0, bsc=1, actnt=0, sznt=0)
for a in sys.argv[2:]:
    k, v = a.split("="); assert k in opt, k; opt[k] = int(v)
g = Asm(); I = g.I; C = g.C
NWG = 256
STG = 49152; NSTG = 3; BOFF = 32768
CNT = STG * NSTG
LDS_BYTES = CNT + 64
WB_OFF = (1 << 20) if opt["stamps"] else 0
WB_BYTES = 28 * 16 * 16384
FB_OFF = WB_BYTES
FL_OFF = FB_OFF + 28 * 128
WS_BYTES = FL_OFF + 28 * 128
FKEY = 0x9e3779b1
OSTF = {0: "", 1: " sc1", 2: " sc0 sc1", 3: " nt", 4: " sc1 nt"}[opt["ostf"]]
S_X, S_Q, S_S, S_Z, S_ACT, S_OUT, S_WB = 16, 20, 24, 28, 32, 36, 68
S_WV = 44; S_MI = 45; S_NI = 46; S_T0 = 47; S_T1 = 48; S_U = 49; S_T2 = 55
S_OB = 50; S_OA = 51; S_STG = 52; S_MA = 53; S_XCD = 54; S_SLOT = 63; S_P = 66; S_CS = 67; S_PB = 76; S_NP = 77; S_FL = 78; S_PEND = 79; S_SP = 80
S_F = 84
VQ = [128, 56]; VR = [160, 88]; VSCs = [168, 8]; VOs = [32, 32]; VOA = 16
VAD = [(5, 6, 7), (100, 101, 102)]
VFA = 113; VF0 = 114; VCN = 115; VTMP = 116

def kreg(idx): return 100 if idx == 0 else 84 + 2*idx
def stamp_setup():
    if not opt["stamps"]: return
    g.srd(56, 42, 1 << 20)
    I("s_lshl_b32 s62, s2, 3"); I(f"s_add_u32 s62, s62, s{S_WV}"); I("s_lshl_b32 s62, s62, 6")
def keep(idx):
    if opt["stamps"]: I(f"s_memrealtime s[{kreg(idx)}:{kreg(idx)+1}]")
NK = [0]
def keep_if(reg, val, idx):
    if not opt["stamps"]: return
    NK[0] += 1
    I(f"s_cmp_lg_u32 s{reg}, {val}"); I(f"s_cbranch_scc1 L_k{NK[0]}"); keep(idx); g.LBL(f"L_k{NK[0]}")
def flush_keeps(idxs, vt=8):
    if not opt["stamps"]: return
    I("s_waitcnt lgkmcnt(0)")
    for idx in idxs:
        I(f"v_mov_b32 v{vt}, s{kreg(idx)}"); I(f"v_mov_b32 v{vt+1}, 0"); I(f"v_mov_b32 v{vt+2}, s62")
        I(f"buffer_store_dwordx2 v[{vt}:{vt+1}], v{vt+2}, s[56:59], 0 offen offset:{idx*8}")
def next_stage():
    I(f"s_add_u32 s{S_STG}, s{S_STG}, {STG}"); I(f"s_cmp_ge_u32 s{S_STG}, {STG*NSTG}"); I(f"s_cselect_b32 s{S_STG}, 0, s{S_STG}")
def ld_A(n=8):
    for j in range(n):
        if j % 4 == 0:
            if j == 0: I(f"s_add_u32 m0, s{S_STG}, s{S_MA}")
            else:      I("s_add_u32 m0, m0, 4096")
            if j == 8: I(f"s_add_u32 s{S_OA}, s{S_OA}, {64*2048}")
            else: I("s_nop 0")
        I(f"buffer_load_dwordx4 v{VOA+j%8}, s[{S_X}:{S_X+3}], s{S_OA} offen offset:{(j%4)*1024} lds")
def step_of_pos():
    I(f"s_add_u32 s{S_T0}, s{S_U}, s{S_MI}"); I(f"s_add_u32 s{S_CS}, s{S_T0}, 7"); I(f"s_and_b32 s{S_CS}, s{S_CS}, 7")
    I(f"s_and_b32 s{S_T0}, s{S_T0}, 7"); I(f"s_or_b32 s{S_T0}, s{S_T0}, 8")
    I(f"s_cmp_ge_u32 s{S_U}, 9")
    I(f"s_cselect_b32 s{S_CS}, s{S_T0}, s{S_CS}")
def common_setup():
    I(f"s_add_u32 s{S_WB}, s42, {WB_OFF}"); I(f"s_addc_u32 s{S_WB+1}, s43, 0"); I(f"s_mov_b32 s{S_WB+2}, {WS_BYTES}"); I(f"s_mov_b32 s{S_WB+3}, 0x00020000")
    C("hand-off words: chunk published <=> flag == base + KEY; base as found at entry (scalar path)")
    I(f"s_lshl_b32 s{S_T0}, s{S_NI}, 7"); I(f"s_add_u32 s{S_T0}, s{S_T0}, {FB_OFF}")
    I(f"s_add_u32 s82, s{S_WB}, s{S_T0}"); I(f"s_addc_u32 s83, s{S_WB+1}, 0")
    I(f"s_load_dwordx16 s[{S_F}:{S_F+15}], s[82:83], 0")
    I("v_and_b32 v29, 15, v2"); I("v_lshlrev_b32 v29, 2, v29"); I(f"v_add_u32 v29, s{S_T0}, v29")
    I(f"v_add_u32 v{VFA}, {FL_OFF - FB_OFF}, v29")
    I(f"s_lshl_b32 s{S_T0}, s{S_NI}, 4"); I(f"s_add_u32 s{S_T0}, s{S_T0}, s{S_MI}"); I(f"s_lshl_b32 s{S_SP}, s{S_T0}, 14")
    I("v_lshlrev_b32 v25, 4, v2")
    g.srd(S_X, 4, M*K*2)
    stamp_setup()
    C("A DMA offsets: (m0+64b+8j+(l>>3))*2048 + (((l&7)^((4(j&1)+(l>>4))&7))*16) - (j%4)*1024")
    I(f"s_lshl_b32 s{S_T0}, s{S_T2}, 6"); I(f"s_lshl_b32 s{S_T1}, s{S_MI}, 8"); I(f"s_add_u32 s{S_T0}, s{S_T0}, s{S_T1}"); I(f"s_lshl_b32 s{S_T0}, s{S_T0}, 11")
    I("v_lshrrev_b32 v11, 3, v2"); I("v_lshlrev_b32 v11, 11, v11"); I(f"v_add_u32 v11, s{S_T0}, v11")
    I("v_and_b32 v12, 7, v2"); I("v_lshrrev_b32 v13, 4, v2"); I("v_xor_b32 v12, v12, v13"); I("v_xor_b32 v13, 4, v12")
    I("v_lshl_add_u32 v12, v12, 4, v11"); I("v_lshl_add_u32 v13, v13, 4, v11")
    for j in range(8): I(f"v_add_u32 v{VOA+j}, {8*j*2048 - (j%4)*1024}, v{12 + (j&1)}")
    I(f"s_lshl_b32 s{S_MA}, s{S_T2}, 13")
def flags_to_vgpr():
    I("s_waitcnt lgkmcnt(0)")
    I(f"v_mov_b32 v{VF0}, 0")
    for l in range(16): I(f"v_writelane_b32 v{VF0}, s{S_F+l}, {l}")
    I(f"v_add_u32 v{VF0}, {FKEY:#x}, v{VF0}")

keep(0)
I(f"s_cmp_ge_u32 s2, {NWG}")
I("s_cbranch_scc1 L_end")
I("s_load_dwordx4 s[4:7], s[0:1], 0")
I("s_load_dwordx4 s[8:11], s[0:1], 16")
I("s_load_dwordx4 s[12:15], s[0:1], 32")
I("s_load_dwordx2 s[42:43], s[0:1], 56")
I("v_lshrrev_b32 v1, 6, v0")
I("v_and_b32 v2, 63, v0")
I(f"s_and_b32 s{S_XCD}, s2, 7")
I(f"v_readfirstlane_b32 s{S_WV}, v1")
I(f"s_lshr_b32 s{S_SLOT}, s2, 3")
I("v_and_b32 v3, 31, v2"); I("v_lshrrev_b32 v4, 5, v2")
I(f"s_and_b32 s{S_P}, s{S_WV}, 3")
I(f"s_cmp_ge_u32 s{S_SLOT}, 28")
I("s_cbranch_scc1 L_help")
I(f"s_and_b32 s{S_MI}, s{S_XCD}, 1"); I(f"s_lshl_b32 s{S_MI}, s{S_MI}, 2")
I(f"s_and_b32 s{S_T2}, s{S_SLOT}, 3"); I(f"s_add_u32 s{S_MI}, s{S_MI}, s{S_T2}")
I(f"s_lshr_b32 s{S_NI}, s{S_XCD}, 1"); I(f"s_mul_i32 s{S_NI}, s{S_NI}, 7")
I(f"s_lshr_b32 s{S_T2}, s{S_SLOT}, 2"); I(f"s_add_u32 s{S_NI}, s{S_NI}, s{S_T2}")
C("panel columns: two 64-column pieces of the 256-column block ni>>1: pieces (0,3) for even ni, (1,2) for odd ni")
if opt["il"]:
    I(f"s_and_b32 s74, s{S_NI}, 1"); I("s_lshl_b32 s75, s74, 1"); I("s_sub_u32 s75, 2, s75"); I("s_lshl_b32 s75, s75, 4")
    I(f"s_lshr_b32 s{S_T0}, s{S_NI}, 1"); I(f"s_lshl_b32 s{S_T0}, s{S_T0}, 2"); I(f"s_add_u32 s74, s74, s{S_T0}"); I("s_lshl_b32 s74, s74, 4")
else:
    I("s_mov_b32 s75, 0"); I(f"s_lshl_b32 s74, s{S_NI}, 5")
I("v_lshrrev_b32 v14, 4, v3"); I("v_mul_u32_u24 v14, s75, v14"); I("v_add3_u32 v14, v14, v3, s74")
C("v5 = q offset (64*mi+16p+8h)*14336 + 16*quad ; v6 = scale offset ; v7 = act offset (chunk E; L = +8 steps)")
I(f"s_lshl_b32 s{S_T2}, s{S_MI}, 2"); I(f"s_add_u32 s{S_T2}, s{S_T2}, s{S_P}")
I(f"s_mul_i32 s{S_T0}, s{S_T2}, {16*N*4}")
I(f"v_mul_u32_u24 v5, {8*N*4}, v4"); I("v_lshl_add_u32 v5, v14, 4, v5"); I(f"v_add_u32 v5, s{S_T0}, v5")
I(f"s_lshr_b32 s{S_T0}, s{S_T2}, 1"); I(f"s_mul_i32 s{S_T0}, s{S_T0}, {N*2}")
I("v_lshlrev_b32 v6, 3, v14"); I(f"v_add_u32 v6, s{S_T0}, v6")
I(f"s_lshl_b32 s{S_T0}, s{S_T2}, 5"); I("v_lshlrev_b32 v7, 4, v4"); I(f"v_add_u32 v7, s{S_T0}, v7")
C("v8 = image offset in chunk: (2p+h)*2048 + (i&1)*1024 + (((i>>1)^(4*(i&1)))*16)  (+ c*256)")
I(f"s_cmp_lt_u32 s{S_WV}, 4")
I("s_cbranch_scc1 L_cons")

I("s_waitcnt lgkmcnt(0)")
g.srd(S_Q, 6, K*N*4)
Q = []
def ldq(st, e):
    I(f"s_mov_b32 s{S_T0}, {(e + 512*st)*N*4}")
    I(f"buffer_load_dwordx4 v[{VQ[st]+4*e}:{VQ[st]+4*e+3}], v{VAD[st][0]}, s[{S_Q}:{S_Q+3}], s{S_T0} offen nt"); Q.append(("q", st, e))
def small(st):
    R = VR[st]
    I(f"s_mov_b32 s{S_T0}, {st*16*N*2}")
    I(f"buffer_load_dwordx2 v[{R}:{R+1}], v{VAD[st][1]}, s[{S_S}:{S_S+3}], s{S_T0} offen" + (" nt" if opt["sznt"] else ""))
    I(f"buffer_load_dwordx2 v[{R+2}:{R+3}], v{VAD[st][1]}, s[{S_Z}:{S_Z+3}], s{S_T0} offen" + (" nt" if opt["sznt"] else ""))
    I(f"buffer_load_dwordx4 v[{R+4}:{R+7}], v{VAD[st][2]}, s[{S_ACT}:{S_ACT+3}], 0 offen offset:{st*1024}" + (" nt" if opt["actnt"] else "")); Q.extend([("s", st, 0)]*3)
def wait_for(pred):
    last = max([i for i, t in enumerate(Q) if pred(t)], default=-1)
    if last >= 0: I(f"s_waitcnt vmcnt({len(Q)-1-last})")
    del Q[:last+1]
for e in range(8):
    if e == opt["smpos"]:
        g.srd(S_S, 8, 32*N*2); g.srd(S_Z, 10, 32*N*2); g.srd(S_ACT, 12, K*2); small(0)
    ldq(0, e)
I("s_barrier")
I(f"s_sub_u32 s{S_T2}, s{S_WV}, 5"); I(f"s_lshl_b32 s{S_T2}, s{S_T2}, 1"); I(f"s_and_b32 s{S_T2}, s{S_T2}, 2")
common_setup()
I(f"s_lshl_b32 s{S_T0}, s{S_NI}, 18"); I(f"v_add_u32 v24, s{S_T0}, v25")
C("v8 = image offset in chunk: (2p+h)*2048 + (i&1)*1024 + (((i>>1)^(4*(i&1)))*16)  (+ c*256)")
I(f"s_lshl_b32 s{S_T0}, s{S_P}, 12")
I("v_lshlrev_b32 v8, 11, v4"); I(f"v_add_u32 v8, s{S_T0}, v8")
I("v_and_b32 v9, 1, v3"); I("v_lshl_add_u32 v8, v9, 10, v8"); I("v_lshlrev_b32 v9, 2, v9")
I("v_lshrrev_b32 v10, 1, v3"); I("v_xor_b32 v10, v10, v9"); I("v_lshl_add_u32 v8, v10, 4, v8")
flags_to_vgpr()
def unpack(st):
    R = VR[st]; VSC = VSCs[st]
    wait_for(lambda t: t[0] == "s" and t[1] == st)
    for d in range(4):
        I(f"v_lshlrev_b32 v{VSC+2*d}, 16, v{R+d}"); I(f"v_and_b32 v{VSC+2*d+1}, 0xffff0000, v{R+d}")
    for d in range(4):
        I(f"v_lshlrev_b32 v{VSC+8+2*d}, 16, v{R+4+d}"); I(f"v_and_b32 v{VSC+9+2*d}, 0xffff0000, v{R+4+d}")
    for T in range(4): I(f"v_mul_f32 v{VSC+4+T}, -v{VSC+4+T}, v{VSC+T}")
def conv_row(st, e, after_wait=None):
    wait_for(lambda t: t == ("q", st, e))
    if after_wait: after_wait()
    q = VQ[st] + 4*e; o = VOs[st]; VSC = VSCs[st]
    for c in range(4): I(f"v_cvt_f32_i32 v{q+c}, v{q+c}")
    for c in range(4): I(f"v_fma_f32 v{q+c}, v{q+c}, v{VSC+c}, v{VSC+4+c}")
    for c in range(4): I(f"v_mul_f32 v{q+c}, v{q+c}, v{VSC+8+e}")
    if e & 1:
        for c in range(4): I(f"v_cvt_pk_bf16_f32 v{o+4*c+e//2}, v{q-4+c}, v{q+c}")
C("dequantise: w = bf16(((float)q*s - z*s) * a[k]), row by row as the loads land")
VO = 32
I(f"v_mov_b32 v{VCN}, {CNT}"); I(f"v_mov_b32 v{VTMP}, 1")
unpack(0)
for e in range(8): conv_row(0, e)
for c in range(4 if opt["est"] else 0): I(f"buffer_store_dwordx4 v[{VO+4*c}:{VO+4*c+3}], v8, s[{S_WB}:{S_WB+3}], s{S_SP} offen offset:{c*256} sc1")
for c in range(4): I(f"ds_write_b128 v8, v[{VO+4*c}:{VO+4*c+3}] offset:{BOFF + c*256}")
I("s_waitcnt lgkmcnt(0)")
keep(1)
I("s_barrier")
I("s_waitcnt vmcnt(0)")
keep(2)
I("s_mov_b64 exec, 1")
I(f"ds_add_rtn_u32 v{VTMP+1}, v{VCN}, v{VTMP}")
I("s_waitcnt lgkmcnt(0)")
I(f"v_readfirstlane_b32 s{S_T0}, v{VTMP+1}")
I(f"s_cmp_lg_u32 s{S_T0}, 3")
I("s_cbranch_scc1 L_nf0")
I(f"s_lshl_b32 s{S_T1}, 1, s{S_MI}")
I(f"s_mov_b32 exec_lo, s{S_T1}")
I(f"buffer_store_dword v{VF0}, v{VFA}, s[{S_WB}:{S_WB+3}], 0 offen sc1")
g.LBL("L_nf0")
I("s_mov_b64 exec, -1")
if opt["pdel"]: I("s_barrier")
I(f"s_mov_b32 s{S_STG}, {STG}")
I(f"s_mov_b32 s{S_U}, 2")
I(f"s_cmp_eq_u32 s{S_WV}, 4")
I("s_cbranch_scc1 L_bload")
I(f"s_cmp_eq_u32 s{S_WV}, 7")
I("s_cbranch_scc1 L_copy")
C("waves 5,6: A tiles")
I(f"s_lshl_b32 s{S_OA}, s{S_MI}, 7"); I(f"s_add_u32 s{S_OA}, s{S_OA}, 1024"); ld_A(16)
g.LBL("L_aloop")
step_of_pos(); next_stage(); I(f"s_lshl_b32 s{S_OA}, s{S_CS}, 7"); ld_A(16)
I("s_waitcnt vmcnt(16)")
I("s_barrier")
I(f"s_add_u32 s{S_U}, s{S_U}, 1")
I(f"s_cmp_lt_u32 s{S_U}, 16")
I("s_cbranch_scc1 L_aloop")
I("s_waitcnt vmcnt(0)")
I("s_barrier")
flush_keeps([0, 1, 2])
I("s_endpgm")

g.LBL("L_copy")
C("wave 7: copy the L image (stage 1, complete at B_1) out to ws, publish it, end")
I(f"v_add_u32 v26, {STG + BOFF}, v25")
I(f"s_add_u32 s{S_SP}, s{S_SP}, {8*16384}")
I("s_barrier")
for j in range(16): I(f"ds_read_b128 v[{128+4*j}:{131+4*j}], v26 offset:{j*1024}")
I("s_waitcnt lgkmcnt(0)")
I("s_barrier")
for jj in range(4):
    for j in range(4): I(f"buffer_store_dwordx4 v[{128+16*jj+4*j}:{131+16*jj+4*j}], v25, s[{S_WB}:{S_WB+3}], s{S_SP} offen offset:{j*1024} sc1")
    I(f"s_add_u32 s{S_SP}, s{S_SP}, 4096")
    if jj == 1: I("s_barrier")
I("s_barrier")
I("s_waitcnt vmcnt(0)")
I(f"s_lshl_b32 s{S_T1}, 256, s{S_MI}")
I(f"s_mov_b32 exec_lo, s{S_T1}"); I("s_mov_b32 exec_hi, 0")
I(f"buffer_store_dword v{VF0}, v{VFA}, s[{S_WB}:{S_WB+3}], 0 offen sc1")
I("s_mov_b64 exec, -1")
flush_keeps([0, 1, 2])
I("s_endpgm")

g.LBL("L_bload")
C("wave 4: S_U next position to issue, S_PB last barrier passed, S_FL mask of published steps")
I(f"s_mov_b32 s{S_PB}, 0"); I(f"s_mov_b32 s{S_FL}, 0"); I(f"s_mov_b32 s{S_NP}, 0")
if opt["sp"]:
    C("first looks at the flags go through the scalar path (they do not queue behind the vector loads)")
    step_of_pos()
    I("s_mov_b32 s81, 0")
    I("s_mov_b64 exec, 0xffff")
    g.LBL("L_spoll")
    I(f"s_load_dwordx16 s[20:35], s[82:83], {FL_OFF - FB_OFF} glc")
    I("s_waitcnt lgkmcnt(0)")
    for l in range(8): I(f"v_writelane_b32 v28, s{20+l}, {l}")
    I(f"v_cmp_eq_u32 vcc, v28, v{VF0}")
    I(f"s_and_b32 s{S_FL}, vcc_lo, 0xff")
    I(f"s_bitcmp1_b32 s{S_FL}, s{S_CS}")
    I("s_cbranch_scc1 L_spx")
    I("s_add_u32 s81, s81, 1"); I(f"s_cmp_lt_u32 s81, {opt['sp']}"); I("s_cbranch_scc1 L_spoll")
    g.LBL("L_spx")
    I("s_mov_b64 exec, -1")
    pass
g.LBL("L_sm")
I(f"s_mov_b32 s{S_PEND}, 0")
I(f"s_cmp_ge_u32 s{S_U}, 16")
I("s_cbranch_scc1 L_trybar")
step_of_pos()
I(f"s_bitcmp1_b32 s{S_FL}, s{S_CS}")
I("s_cbranch_scc0 L_dopoll")
I(f"s_add_u32 s{S_T0}, s{S_PB}, 2")
I(f"s_cmp_gt_u32 s{S_U}, s{S_T0}")
I("s_cbranch_scc1 L_trybar")
keep_if(S_U, 2, 5); keep_if(S_U, 8, 6)
next_stage()
I(f"s_lshl_b32 s{S_OB}, s{S_CS}, 14")
for jj in range(4):
    I(f"s_add_u32 m0, s{S_STG}, {BOFF + jj*4096}")
    if jj: I(f"s_add_u32 s{S_OB}, s{S_OB}, 4096")
    else: I("s_nop 0")
    for j in range(4): I(f"buffer_load_dwordx4 v24, s[{S_WB}:{S_WB+3}], s{S_OB} offen offset:{j*1024}" + (" sc1" if opt["bsc"] else "") + " lds")
I(f"s_add_u32 s{S_U}, s{S_U}, 1")
I("s_branch L_sm")
g.LBL("L_dopoll")
I("s_mov_b64 exec, 0xffff")
I(f"buffer_load_dword v28, v{VFA}, s[{S_WB}:{S_WB+3}], 0 offen sc1")
I(f"s_add_u32 s{S_NP}, s{S_NP}, 1")
I(f"s_mov_b32 s{S_PEND}, 1")
if opt["npoll"]:
    I(f"s_cmp_le_u32 s{S_NP}, {opt['npoll']}")
    I("s_cbranch_scc1 L_nobar")
g.LBL("L_trybar")
I(f"s_sub_u32 s{S_T0}, s{S_U}, s{S_PB}")
I(f"s_cmp_le_u32 s{S_T0}, 1")
I("s_cbranch_scc1 L_nobar")
I(f"s_lshl_b32 s{S_T0}, s{S_T0}, 1"); I(f"s_add_u32 s{S_T0}, s{S_T0}, s{S_PEND}")
I(f"s_cmp_eq_u32 s{S_T0}, 6"); I("s_cbranch_scc1 L_w16")
I(f"s_cmp_eq_u32 s{S_T0}, 7"); I("s_cbranch_scc1 L_w17")
I(f"s_cmp_eq_u32 s{S_T0}, 5"); I("s_cbranch_scc1 L_w1")
I("s_waitcnt vmcnt(0)")
g.LBL("L_w1")
I("s_waitcnt vmcnt(1)")
g.LBL("L_w16")
I("s_waitcnt vmcnt(16)")
g.LBL("L_w17")
I("s_waitcnt vmcnt(17)")
I("s_barrier")
I(f"s_add_u32 s{S_PB}, s{S_PB}, 1")
I(f"s_cmp_ge_u32 s{S_PB}, 15")
I("s_cbranch_scc1 L_bdone")
g.LBL("L_nobar")
I(f"s_cmp_eq_u32 s{S_PEND}, 0")
I("s_cbranch_scc1 L_sm")
I(f"s_cmp_lt_u32 s{S_NP}, 0x40000")
I("s_cbranch_scc1 L_waitpoll")
I(f"s_mov_b32 s{S_FL}, 0xffff")
g.LBL("L_waitpoll")
I("s_waitcnt vmcnt(0)")
g.LBL("L_gotpoll")
I(f"v_cmp_eq_u32 vcc, v28, v{VF0}")
I(f"s_or_b32 s{S_FL}, s{S_FL}, vcc_lo")
I("s_mov_b64 exec, -1")
I("s_branch L_sm")
g.LBL("L_bdone")
C("every sharer has published, hence read the base words: re-arm this WG's two words (base := flag value)")
I(f"s_lshl_b32 s{S_T1}, 0x101, s{S_MI}")
I(f"s_mov_b32 exec_lo, s{S_T1}"); I("s_mov_b32 exec_hi, 0")
I(f"buffer_store_dword v{VF0}, v29, s[{S_WB}:{S_WB+3}], 0 offen sc1")
I("s_mov_b64 exec, -1")
if opt["stamps"]: I("s_waitcnt lgkmcnt(0)"); I(f"s_mov_b32 s98, s{S_NP}" if not opt["sp"] else "s_mov_b32 s98, s81")
flush_keeps([0, 1, 2, 5, 6, 7])
I("s_endpgm")

g.LBL("L_cons")
I("v_mov_b32 v14, 0"); I(f"v_mov_b32 v{VCN}, {CNT}")
I(f"ds_write_b32 v{VCN}, v14")
I("v_mov_b32 v100, v5"); I("v_mov_b32 v101, v6"); I("v_mov_b32 v102, v7")
if opt["half"]:
    I(f"s_and_b32 s{S_T0}, s{S_MI}, 1"); I(f"s_lshl_b32 s{S_T0}, s{S_T0}, 30"); I(f"v_add_u32 v100, s{S_T0}, v100")
I(f"s_lshl_b32 s{S_T0}, s{S_P}, 12")
I("v_lshlrev_b32 v8, 11, v4"); I(f"v_add_u32 v8, s{S_T0}, v8")
I("v_and_b32 v9, 1, v3"); I("v_lshl_add_u32 v8, v9, 10, v8"); I("v_lshlrev_b32 v9, 2, v9")
I("v_lshrrev_b32 v10, 1, v3"); I("v_xor_b32 v10, v10, v9"); I("v_lshl_add_u32 v8, v10, 4, v8")
I(f"v_add_u32 v103, {STG}, v8")
C("A DMA offsets")
I(f"s_lshl_b32 s{S_T0}, s{S_P}, 6"); I(f"s_lshl_b32 s{S_T1}, s{S_MI}, 8"); I(f"s_add_u32 s{S_T0}, s{S_T0}, s{S_T1}"); I(f"s_lshl_b32 s{S_T0}, s{S_T0}, 11")
I("v_lshrrev_b32 v11, 3, v2"); I("v_lshlrev_b32 v11, 11, v11"); I(f"v_add_u32 v11, s{S_T0}, v11")
I("v_and_b32 v12, 7, v2"); I("v_lshrrev_b32 v13, 4, v2"); I("v_xor_b32 v12, v12, v13"); I("v_xor_b32 v13, 4, v12")
I("v_lshl_add_u32 v12, v12, 4, v11"); I("v_lshl_add_u32 v13, v13, 4, v11")
for j in range(8): I(f"v_add_u32 v{VOA+j}, {8*j*2048 - (j%4)*1024}, v{12 + (j&1)}")
I(f"s_lshl_b32 s{S_MA}, s{S_P}, 13")
I("s_waitcnt lgkmcnt(0)")
g.srd(S_X, 4, M*K*2); g.srd(S_Q, 6, K*N*4); g.srd(S_S, 8, 32*N*2); g.srd(S_Z, 10, 32*N*2); g.srd(S_ACT, 12, K*2)
I(f"s_mov_b32 s{S_STG}, 0"); I(f"s_lshl_b32 s{S_OA}, s{S_MI}, 7")
I("s_barrier")
Q[:] = []
LH = opt["lh"]
if opt["a0f"]: ld_A(); Q.extend([("A", 0, 0)]*8)
if opt["smL"]: small(1)
for e in range(LH): ldq(1, e)
if not opt["a0f"]: ld_A(); Q.extend([("A", 0, 0)]*8)
stamp_setup()
VA0 = 104; VA = 108; VOUT = 112
I("v_lshrrev_b32 v3, 4, v2"); I("v_and_b32 v4, 15, v2")
I("v_lshlrev_b32 v5, 7, v4"); I(f"v_add_u32 v5, s{S_MA}, v5"); I("v_bfe_u32 v6, v4, 1, 3")
for t in range(2):
    I(f"v_add_u32 v10, {4*t}, v3"); I("v_xor_b32 v10, v10, v6"); I(f"v_lshl_add_u32 v{VA0+t}, v10, 4, v5")
I("v_lshlrev_b32 v10, 11, v3"); I(f"v_add_u32 v10, {BOFF}, v10")
I(f"v_lshl_add_u32 v{VA0+2}, v4, 4, v10")
I("v_xor_b32 v11, 4, v4"); I(f"v_lshl_add_u32 v{VA0+3}, v11, 4, v10")
for t in range(4): I(f"v_mov_b32 v{VA+t}, v{VA0+t}")
I(f"s_lshl_b32 s{S_T0}, s{S_P}, 6"); I(f"s_lshl_b32 s{S_T1}, s{S_MI}, 8"); I(f"s_add_u32 s{S_T0}, s{S_T0}, s{S_T1}")
I(f"s_mul_i32 s{S_T0}, s{S_T0}, {N*2}"); I(f"s_lshl_b32 s{S_T1}, s74, 3"); I(f"s_add_u32 s{S_T0}, s{S_T0}, s{S_T1}")
I(f"v_mul_u32_u24 v10, {4*N*2}, v3"); I("v_lshl_add_u32 v10, v4, 4, v10")
I("v_lshrrev_b32 v11, 3, v4"); I("v_mul_u32_u24 v11, s75, v11"); I("v_lshl_add_u32 v10, v11, 3, v10"); I(f"v_add_u32 v{VOUT}, s{S_T0}, v10")
g.srd(S_OUT, 14, M*N*2)
ACC = 128
def acc(a, T): return ACC + (a * 8 + T) * 4
FS = [8, 56]
def fA(s, a): return FS[s] + 4 * a
def fB(s, T): return FS[s] + 16 + 4 * T
def rdA(s, a, t): I(f"ds_read_b128 v[{fA(s,a)}:{fA(s,a)+3}], v{VA+t} offset:{a*2048}")
def rdB(s, T, t): I(f"ds_read_b128 v[{fB(s,T)}:{fB(s,T)+3}], v{VA+2+(T>>2)} offset:{t*8192 + T*256}")
def mfma(s, a, T, first=False):
    d = acc(a, T)
    I(f"v_mfma_f32_16x16x32_bf16 v[{d}:{d+3}], v[{fA(s,a)}:{fA(s,a)+3}], v[{fB(s,T)}:{fB(s,T)+3}], " + ("0" if first else f"v[{d}:{d+3}]"))
MORD = []
for a in range(4): MORD += [(a, T) for T in (range(8) if a % 2 == 0 else range(7, -1, -1))]
def reads(s, t):
    return [lambda: rdA(s,0,t)] + [(lambda T: (lambda: rdB(s,T,t)))(T) for T in range(8)] + [(lambda a: (lambda: rdA(s,a,t)))(a) for a in range(1,4)]
BP = opt["barpos"]
def half0(first):
    I("s_waitcnt lgkmcnt(0)")
    rd = reads(1, 1)
    for idx, (a, T) in enumerate(MORD):
        mfma(0, a, T, first)
        if idx < len(rd): rd[idx]()
        if idx == 16: next_stage()
        if idx == 18: I(f"s_add_u32 s{S_U}, s{S_U}, 1")
        if idx == 20:
            for tt in range(4): I(f"v_add_u32 v{VA+tt}, s{S_STG}, v{VA0+tt}")
I("s_barrier")
if not opt["smL"]: small(1)
for e in range(LH, 8): ldq(1, e)
wait_for(lambda t: t[0] == "A")
keep(1)
if opt["stamps"]: I("s_memtime s[64:65]")
C("position 0 with one fragment set (the other registers receive the L chunk)")
for t in range(2):
    for r in reads(0, t): r()
    I("s_waitcnt lgkmcnt(0)")
    for (a, T) in MORD: mfma(0, a, T, t == 0)
if opt["pdel"]: I("s_barrier")
unpack(1)
for e in range(8): conv_row(1, e)
for c in range(4): I(f"ds_write_b128 v103, v[{VO+4*c}:{VO+4*c+3}] offset:{BOFF + c*256}")
keep(0)
if opt["prio"]: I(f"s_setprio {opt['prio']}")
I(f"s_mov_b32 s{S_U}, 1"); I(f"s_mov_b32 s{S_STG}, {STG}")
for tt in range(4): I(f"v_add_u32 v{VA+tt}, s{S_STG}, v{VA0+tt}")
I("s_waitcnt lgkmcnt(0)")
I("s_barrier")
keep(4)
for r in reads(0, 0): r()
if not opt["tail2"]:
    g.LBL("L_cloop")
    half0(False)
    I("s_waitcnt lgkmcnt(0)")
    rd = reads(0, 0)
    for idx, (a, T) in enumerate(MORD):
        mfma(1, a, T)
        if idx == BP:
            I(f"s_cmp_ge_u32 s{S_U}, 16")
            I("s_cbranch_scc1 L_ctail")
            I("s_barrier")
            keep_if(S_U, 2, 5); keep_if(S_U, 9, 7)
        if idx > BP and idx - BP - 1 < len(rd): rd[idx-BP-1]()
    I("s_branch L_cloop")
    g.LBL("L_ctail")
    def epi_ops(a):
        ops = []
        for r in range(4):
            d = 8 + 4 * ((a*4 + r) % 12)
            for p in range(4): ops.append(f"v_cvt_pk_bf16_f32 v{d+p}, v{acc(a,2*p)+r}, v{acc(a,2*p+1)+r}")
            ops.append(f"s_mov_b32 s{S_T0}, {(16*a+r)*N*2}")
            ops.append(f"buffer_store_dwordx4 v[{d}:{d+3}], v{VOUT}, s[{S_OUT}:{S_OUT+3}], s{S_T0} offen{OSTF}")
        return ops
    pend = []; done_a = set()
    for idx, (a, T) in enumerate(MORD):
        if idx <= BP: continue
        mfma(1, a, T)
        if opt["epi"]:
            for ap in range(3):
                if ap not in done_a and idx >= 8*ap + 7 + 8:
                    pend += epi_ops(ap); done_a.add(ap)
            for o in pend[:3]: I(o)
            pend = pend[3:]
    keep(2)
    if opt["stamps"]: I("s_memtime s[60:61]")
    for o in pend: I(o)
    rest = [a for a in range(4) if a not in done_a]
    for a in rest[:-1]:
        for o in epi_ops(a): I(o)
    I("s_nop 7")
    for o in epi_ops(rest[-1]): I(o)
else:
    R = opt["R"]
    PH = {0: [[0,1],[2,3]], 1: [[0,1],[2],[3]], 2: [[0,1,2],[3]]}[opt["ph"]]
    g.LBL("L_cloop")
    half0(False)
    I("s_waitcnt lgkmcnt(0)")
    rd = reads(0, 0)
    for idx, (a, T) in enumerate(MORD):
        mfma(1, a, T)
        if idx == BP:
            I("s_barrier")
            keep_if(S_U, 2, 5); keep_if(S_U, 9, 7)
            I(f"s_cmp_ge_u32 s{S_U}, {16-R}")
            I("s_cbranch_scc1 L_ctail")
        if idx > BP and idx - BP - 1 < len(rd): rd[idx-BP-1]()
    I("s_branch L_cloop")
    g.LBL("L_ctail")
    C("last positions are resident together: finish some row tiles early and store them under the remaining MFMAs")
    VP = [VA, 116, 120]
    LQ = []
    def t_read(kind, s_, slot, idx_, pos, t):
        base = VP[pos]
        if kind == "A": I(f"ds_read_b128 v[{fA(s_,slot)}:{fA(s_,slot)+3}], v{base+t} offset:{idx_*2048}")
        else: I(f"ds_read_b128 v[{fB(s_,idx_)}:{fB(s_,idx_)+3}], v{base+2+(idx_>>2)} offset:{t*8192 + idx_*256}")
        LQ.append((kind, s_, slot if kind == "A" else idx_))
    def t_need(ids):
        last = max([i for i, x in enumerate(LQ) if x in ids], default=-1)
        if last >= 0:
            I(f"s_waitcnt lgkmcnt({min(15, len(LQ)-1-last)})"); del LQ[:last+1]
    subs = [(tiles, pos, t) for tiles in PH for pos in range(R) for t in range(2)]
    def sub_reads(k):
        tiles, pos, t = subs[k]; s_ = k & 1
        return [("A", s_, 0, tiles[0], pos, t)] + [("B", s_, 0, T, pos, t) for T in range(8)] + [("A", s_, sl, tiles[sl], pos, t) for sl in range(1, len(tiles))]
    TMP = [fA(0,3), fA(1,3), 124, 0, 4] + ([fA(0,2), fA(1,2)] if opt["ph"] != 2 else [])
    ne = [0]
    def epi_ops(a):
        ops = []
        for r in range(4):
            d = TMP[ne[0] % len(TMP)]; ne[0] += 1
            for p in range(4): ops.append(f"v_cvt_pk_bf16_f32 v{d+p}, v{acc(a,2*p)+r}, v{acc(a,2*p+1)+r}")
            ops.append(f"s_mov_b32 s{S_T0}, {(16*a+r)*N*2}")
            ops.append(f"buffer_store_dwordx4 v[{d}:{d+3}], v{VOUT}, s[{S_OUT}:{S_OUT+3}], s{S_T0} offen{OSTF}")
        return ops
    C("rest of the last ordinary position")
    nxt = sub_reads(0)
    for idx, (a, T) in enumerate(MORD):
        if idx <= BP: continue
        mfma(1, a, T)
        if nxt: t_read(*nxt.pop(0))
        for pz in range(1, R):
            if idx == 25 + 2*pz: next_stage()
            if idx == 26 + 2*pz:
                for tt in range(4): I(f"v_add_u32 v{VP[pz]+tt}, s{S_STG}, v{VA0+tt}")
    assert not nxt
    seq = []
    NS = len(subs)
    for k, (tiles, pos, t) in enumerate(subs):
        if opt["merge"] and k == NS - 2 and len(tiles) == 2:
            seq += [(k, 0, T) for T in range(8)] + [(k+1, 0, T) for T in range(8)] + [(k, 1, T) for T in range(8)] + [(k+1, 1, T) for T in range(8)]
            break
        for sl in range(len(tiles)):
            seq += [(k, sl, T) for T in (range(8) if sl % 2 == 0 else range(7, -1, -1))]
    last_use = {}
    for i, (k, sl, T) in enumerate(seq): last_use[subs[k][0][sl]] = i
    first_of = {}
    for i, (k, sl, T) in enumerate(seq): first_of.setdefault(k, i)
    pend = []; nxt = []; stored = set()
    for i, (k, sl, T) in enumerate(seq):
        s_ = k & 1; tiles, pos, t = subs[k]
        t_need([("A", s_, sl), ("B", s_, T)])
        d = acc(tiles[sl], T)
        I(f"v_mfma_f32_16x16x32_bf16 v[{d}:{d+3}], v[{fA(s_,sl)}:{fA(s_,sl)+3}], v[{fB(s_,T)}:{fB(s_,T)+3}], v[{d}:{d+3}]")
        if first_of[k] == i and k + 1 < NS:
            assert not nxt
            nxt = sub_reads(k+1)
            if k + 1 < 2*R and (k + 1) % 2 == 0: I("s_barrier")
        nrd = 2 if (len(tiles) == 1 or (opt["merge"] and k == NS - 2)) else 1
        if first_of[k] != i or nrd == 2:
            for _ in range(nrd):
                if nxt: t_read(*nxt.pop(0))
        for a in range(4):
            if a not in stored and i >= last_use[a] + 8:
                pend += epi_ops(a); stored.add(a)
        n = opt["eper"] if not nxt else 1
        for o in pend[:n]: I(o)
        pend = pend[n:]
    keep(2)
    if opt["stamps"]: I("s_memtime s[60:61]")
    for o in pend: I(o)
    I("s_nop 7")
    for a in range(4):
        if a not in stored:
            for o in epi_ops(a): I(o)
if opt["stamps"]:
    I("s_waitcnt vmcnt(0)"); keep(3); I("s_waitcnt lgkmcnt(0)")
    I("s_sub_u32 s96, s60, s64")
    flush_keeps([0, 1, 2, 3, 4, 5, 6, 7])
I("s_endpgm")

g.LBL("L_help")
if opt["cpf"]:
    C("pull the kernel's code into this die's L2 (range-checked)")
    I("s_getpc_b64 s[56:57]")
    g.LBL("L_pc")
    I(f"s_sub_u32 s56, s56, L_pc-{KN}"); I("s_subb_u32 s57, s57, 0")
    I(f"s_mov_b32 s58, L_codeend-{KN}"); I("s_mov_b32 s59, 0x00020000")
    I("v_lshlrev_b32 v10, 7, v0")
    if opt["cpf"] == 2:
        I(f"s_cmp_eq_u32 s{S_SLOT}, 28"); I("s_cselect_b32 s58, s58, 0")
    if opt["cpf"] == 3:
        C("each of the die's four helpers takes every fourth line")
        I("v_lshlrev_b32 v10, 9, v0"); I(f"s_and_b32 s{S_T0}, s{S_SLOT}, 3"); I(f"s_lshl_b32 s{S_T0}, s{S_T0}, 7"); I(f"v_add_u32 v10, s{S_T0}, v10")
    I("buffer_load_dword v9, v10, s[56:59], 0 offen")
I(f"s_sub_u32 s{S_SLOT}, s{S_SLOT}, 28")
C("pass 0: tile mi=4*(xcd&1)+hs, rows 64*(wave&3)+lane, line mi (waves 0-3) / 8+mi (waves 4-7)")
I(f"s_and_b32 s{S_MI}, s{S_XCD}, 1"); I(f"s_lshl_b32 s{S_MI}, s{S_MI}, 2"); I(f"s_add_u32 s{S_MI}, s{S_MI}, s{S_SLOT}")
I(f"s_lshl_b32 s{S_T0}, s{S_MI}, 8"); I(f"s_lshl_b32 s{S_T1}, s{S_P}, 6"); I(f"s_add_u32 s{S_T0}, s{S_T0}, s{S_T1}")
I(f"s_lshl_b32 s{S_T0}, s{S_T0}, 11")
I("v_lshlrev_b32 v5, 11, v2"); I(f"v_add_u32 v5, s{S_T0}, v5")
I(f"s_lshr_b32 s{S_T0}, s{S_WV}, 2"); I(f"s_lshl_b32 s{S_T0}, s{S_T0}, 3"); I(f"s_add_u32 s{S_T0}, s{S_T0}, s{S_MI}"); I(f"s_lshl_b32 s{S_OA}, s{S_T0}, 7")
if not opt["hm"]:
    C("passes 1,2: rows 1024*(xcd&1) + 256*(xcd>>1) + 64*hs + 8*wave + (l>>3), line (l&7), then +8")
    I(f"s_and_b32 s{S_T0}, s{S_XCD}, 1"); I(f"s_lshl_b32 s{S_T0}, s{S_T0}, 10")
    I(f"s_lshr_b32 s{S_T1}, s{S_XCD}, 1"); I(f"s_lshl_b32 s{S_T1}, s{S_T1}, 8"); I(f"s_add_u32 s{S_T0}, s{S_T0}, s{S_T1}")
    I(f"s_lshl_b32 s{S_T1}, s{S_SLOT}, 6"); I(f"s_add_u32 s{S_T0}, s{S_T0}, s{S_T1}")
    I(f"s_lshl_b32 s{S_T1}, s{S_WV}, 3"); I(f"s_add_u32 s{S_T0}, s{S_T0}, s{S_T1}")
    I(f"s_lshl_b32 s{S_T0}, s{S_T0}, 11")
    I("v_lshrrev_b32 v11, 3, v2"); I("v_lshlrev_b32 v11, 11, v11"); I("v_and_b32 v12, 7, v2"); I("v_lshl_add_u32 v11, v12, 7, v11")
    I(f"v_add_u32 v11, s{S_T0}, v11")
    I("s_mov_b32 s72, 0"); I("s_mov_b32 s73, 1024")
else:
    C("passes 1,2 (each line once chip-wide, in order of need): 64 rows per helper (lane = row) of tile 4*(xcd&1)+(xcd>>1); wave w: positions w+2, w+10")
    I(f"s_and_b32 s{S_MI}, s{S_XCD}, 1"); I(f"s_lshl_b32 s{S_MI}, s{S_MI}, 2"); I(f"s_lshr_b32 s{S_T1}, s{S_XCD}, 1"); I(f"s_add_u32 s{S_MI}, s{S_MI}, s{S_T1}")
    I(f"s_lshl_b32 s{S_T0}, s{S_MI}, 8"); I(f"s_lshl_b32 s{S_T1}, s{S_SLOT}, 6"); I(f"s_add_u32 s{S_T0}, s{S_T0}, s{S_T1}"); I(f"s_lshl_b32 s{S_T2}, s{S_T0}, 11")
    I("v_lshlrev_b32 v11, 11, v2"); I(f"v_add_u32 v11, s{S_T2}, v11")
    I(f"s_add_u32 s{S_U}, s{S_WV}, 2"); step_of_pos(); I(f"s_lshl_b32 s72, s{S_CS}, 7")
    I(f"s_add_u32 s{S_U}, s{S_WV}, 10"); step_of_pos(); I(f"s_lshl_b32 s73, s{S_CS}, 7")
    I(f"s_cmp_ge_u32 s{S_WV}, 6"); I("s_cselect_b32 s73, 0x40000000, s73")
I("s_waitcnt lgkmcnt(0)")
g.srd(S_X, 4, M*K*2)
stamp_setup()
if opt["hp0"] == 2:
    I(f"s_cmp_lt_u32 s{S_WV}, 4"); I(f"s_cselect_b32 s{S_OA}, 0x40000000, s{S_OA}")
if opt["hp0"]:
    I(f"buffer_load_dword v15, v5, s[{S_X}:{S_X+3}], s{S_OA} offen")
    if opt["hdel"]: I("s_waitcnt vmcnt(0)")
    keep(3)
    I("s_barrier")
else: keep(3)
if opt["hm"] >= 2:
    I(f"s_cmp_lt_u32 s{S_WV}, {opt['hm']}"); I("s_cbranch_scc1 L_h1"); I("s_barrier"); g.LBL("L_h1")
I(f"buffer_load_dword v14, v11, s[{S_X}:{S_X+3}], s72 offen")
if opt["hm"] >= 2:
    I(f"s_cmp_ge_u32 s{S_WV}, {opt['hm']}"); I("s_cbranch_scc1 L_h2"); I("s_barrier"); g.LBL("L_h2")
if opt["hdel"]: I("s_waitcnt vmcnt(0)"); keep(1)
I("s_barrier")
I(f"buffer_load_dword v13, v11, s[{S_X}:{S_X+3}], s73 offen")
if opt["stamps"]:
    if not opt["hdel"]: I("s_waitcnt vmcnt(1)"); keep(1)
    I("s_waitcnt vmcnt(0)"); keep(2); flush_keeps([0, 1, 2, 3])
g.LBL("L_end")
I("s_endpgm")
g.LBL("L_codeend")

out = HEADER + f"""; Launch geometry (generated by my generator script gen26.py)
; @launch grid=({NWG},1,1) block=(512,1,1) lds={LDS_BYTES}
.amdgcn_target "amdgcn-amd-amdhsa--gfx950"
.text
""" + kernel_text(KN, g.text()) + """.section .rodata,"a"
""" + kd(KN, 256, 102)
open(sys.argv[1], "w").write(out)
print(LDS_BYTES, len(g.L))
```

```python
import sys
from asmlib import *
opt = dict(stamps=0, prio=1, barpos=14, ostf=3, cpf=1, hp0=1, hdel=0, npoll=1, epi=1, prepoll=1, smpos=2, lag=0, a0mode=0, lh=4, pdel=1, hx=1, est=1, a0f=0, smL=0, sp=0, hm=1, il=1, tail2=1, R=2, ph=0, tm=-1, cyc=0, cw=0, mult=5, merge=1, eper=2, half=0, bsc=1, actnt=0, sznt=0)
for a in sys.argv[2:]:
    k, v = a.split("="); assert k in opt, k; opt[k] = int(v)
g = Asm(); I = g.I; C = g.C
NWG = 256
STG = 49152; NSTG = 3; BOFF = 32768
CNT = STG * NSTG
LDS_BYTES = CNT + 64
WB_OFF = (1 << 20) if opt["stamps"] else 0
WB_BYTES = 28 * 16 * 16384
FB_OFF = WB_BYTES
FL_OFF = FB_OFF + 28 * 128
WS_BYTES = FL_OFF + 28 * 128
FKEY = 0x9e3779b1
OSTF = {0: "", 1: " sc1", 2: " sc0 sc1", 3: " nt", 4: " sc1 nt"}[opt["ostf"]]
S_X, S_Q, S_S, S_Z, S_ACT, S_OUT, S_WB = 16, 20, 24, 28, 32, 36, 68
S_WV = 44; S_MI = 45; S_NI = 46; S_T0 = 47; S_T1 = 48; S_U = 49; S_T2 = 55
S_OB = 50; S_OA = 51; S_STG = 52; S_MA = 53; S_XCD = 54; S_SLOT = 63; S_P = 66; S_CS = 67; S_PB = 76; S_NP = 77; S_FL = 78; S_PEND = 79; S_SP = 80
S_F = 84
VQ = [128, 56]; VR = [160, 88]; VSCs = [168, 8]; VOs = [32, 32]; VOA = 16
VAD = [(5, 6, 7), (100, 101, 102)]
VFA = 113; VF0 = 114; VCN = 115; VTMP = 116

def kreg(idx): return 100 if idx == 0 else 84 + 2*idx
def stamp_setup():
    if not opt["stamps"]: return
    g.srd(56, 42, 1 << 20)
    I("s_lshl_b32 s62, s2, 3"); I(f"s_add_u32 s62, s62, s{S_WV}"); I("s_lshl_b32 s62, s62, 6")
def keep(idx):
    if opt["tm"] in (2, 3) and idx not in (0, opt["tm"]): return
    if opt["stamps"]: I(f"s_memrealtime s[{kreg(idx)}:{kreg(idx)+1}]")
NK = [0]
def keep_if(reg, val, idx):
    if not opt["stamps"] or opt["tm"] in (2, 3): return
    NK[0] += 1
    I(f"s_cmp_lg_u32 s{reg}, {val}"); I(f"s_cbranch_scc1 L_k{NK[0]}"); keep(idx); g.LBL(f"L_k{NK[0]}")
def flush_keeps(idxs, vt=8):
    if not opt["stamps"] or opt["tm"] >= 0: return
    I("s_waitcnt lgkmcnt(0)")
    for idx in idxs:
        I(f"v_mov_b32 v{vt}, s{kreg(idx)}"); I(f"v_mov_b32 v{vt+1}, 0"); I(f"v_mov_b32 v{vt+2}, s62")
        I(f"buffer_store_dwordx2 v[{vt}:{vt+1}], v{vt+2}, s[56:59], 0 offen offset:{idx*8}")
def next_stage():
    I(f"s_add_u32 s{S_STG}, s{S_STG}, {STG}"); I(f"s_cmp_ge_u32 s{S_STG}, {STG*NSTG}"); I(f"s_cselect_b32 s{S_STG}, 0, s{S_STG}")
def ld_A(n=8):
    for j in range(n):
        if j % 4 == 0:
            if j == 0: I(f"s_add_u32 m0, s{S_STG}, s{S_MA}")
            else:      I("s_add_u32 m0, m0, 4096")
            if j == 8: I(f"s_add_u32 s{S_OA}, s{S_OA}, {64*2048}")
            else: I("s_nop 0")
        I(f"buffer_load_dwordx4 v{VOA+j%8}, s[{S_X}:{S_X+3}], s{S_OA} offen offset:{(j%4)*1024} lds")
def step_of_pos():
    I(f"s_add_u32 s{S_T0}, s{S_U}, s{S_MI}"); I(f"s_add_u32 s{S_CS}, s{S_T0}, 7"); I(f"s_and_b32 s{S_CS}, s{S_CS}, 7")
    I(f"s_and_b32 s{S_T0}, s{S_T0}, 7"); I(f"s_or_b32 s{S_T0}, s{S_T0}, 8")
    I(f"s_cmp_ge_u32 s{S_U}, 9")
    I(f"s_cselect_b32 s{S_CS}, s{S_T0}, s{S_CS}")
def common_setup():
    I(f"s_add_u32 s{S_WB}, s42, {WB_OFF}"); I(f"s_addc_u32 s{S_WB+1}, s43, 0"); I(f"s_mov_b32 s{S_WB+2}, {WS_BYTES}"); I(f"s_mov_b32 s{S_WB+3}, 0x00020000")
    C("hand-off words: chunk published <=> flag == base + KEY; base as found at entry (scalar path)")
    I(f"s_lshl_b32 s{S_T0}, s{S_NI}, 7"); I(f"s_add_u32 s{S_T0}, s{S_T0}, {FB_OFF}")
    I(f"s_add_u32 s82, s{S_WB}, s{S_T0}"); I(f"s_addc_u32 s83, s{S_WB+1}, 0")
    I(f"s_load_dwordx16 s[{S_F}:{S_F+15}], s[82:83], 0")
    I("v_and_b32 v29, 15, v2"); I("v_lshlrev_b32 v29, 2, v29"); I(f"v_add_u32 v29, s{S_T0}, v29")
    I(f"v_add_u32 v{VFA}, {FL_OFF - FB_OFF}, v29")
    I(f"s_lshl_b32 s{S_T0}, s{S_NI}, 4"); I(f"s_add_u32 s{S_T0}, s{S_T0}, s{S_MI}"); I(f"s_lshl_b32 s{S_SP}, s{S_T0}, 14")
    I("v_lshlrev_b32 v25, 4, v2")
    g.srd(S_X, 4, M*K*2)
    stamp_setup()
    C("A DMA offsets: (m0+64b+8j+(l>>3))*2048 + (((l&7)^((4(j&1)+(l>>4))&7))*16) - (j%4)*1024")
    I(f"s_lshl_b32 s{S_T0}, s{S_T2}, 6"); I(f"s_lshl_b32 s{S_T1}, s{S_MI}, 8"); I(f"s_add_u32 s{S_T0}, s{S_T0}, s{S_T1}"); I(f"s_lshl_b32 s{S_T0}, s{S_T0}, 11")
    I("v_lshrrev_b32 v11, 3, v2"); I("v_lshlrev_b32 v11, 11, v11"); I(f"v_add_u32 v11, s{S_T0}, v11")
    I("v_and_b32 v12, 7, v2"); I("v_lshrrev_b32 v13, 4, v2"); I("v_xor_b32 v12, v12, v13"); I("v_xor_b32 v13, 4, v12")
    I("v_lshl_add_u32 v12, v12, 4, v11"); I("v_lshl_add_u32 v13, v13, 4, v11")
    for j in range(8): I(f"v_add_u32 v{VOA+j}, {8*j*2048 - (j%4)*1024}, v{12 + (j&1)}")
    I(f"s_lshl_b32 s{S_MA}, s{S_T2}, 13")
def flags_to_vgpr():
    I("s_waitcnt lgkmcnt(0)")
    I(f"v_mov_b32 v{VF0}, 0")
    for l in range(16): I(f"v_writelane_b32 v{VF0}, s{S_F+l}, {l}")
    I(f"v_add_u32 v{VF0}, {FKEY:#x}, v{VF0}")

keep(0)
I(f"s_cmp_ge_u32 s2, {NWG}")
I("s_cbranch_scc1 L_end")
I("s_load_dwordx4 s[4:7], s[0:1], 0")
I("s_load_dwordx4 s[8:11], s[0:1], 16")
I("s_load_dwordx4 s[12:15], s[0:1], 32")
I("s_load_dwordx2 s[42:43], s[0:1], 56")
I("v_lshrrev_b32 v1, 6, v0")
I("v_and_b32 v2, 63, v0")
I(f"s_and_b32 s{S_XCD}, s2, 7")
I(f"v_readfirstlane_b32 s{S_WV}, v1")
I(f"s_lshr_b32 s{S_SLOT}, s2, 3")
I("v_and_b32 v3, 31, v2"); I("v_lshrrev_b32 v4, 5, v2")
I(f"s_and_b32 s{S_P}, s{S_WV}, 3")
I(f"s_cmp_ge_u32 s{S_SLOT}, 28")
I("s_cbranch_scc1 L_help")
I(f"s_and_b32 s{S_MI}, s{S_XCD}, 1"); I(f"s_lshl_b32 s{S_MI}, s{S_MI}, 2")
I(f"s_and_b32 s{S_T2}, s{S_SLOT}, 3"); I(f"s_add_u32 s{S_MI}, s{S_MI}, s{S_T2}")
I(f"s_lshr_b32 s{S_NI}, s{S_XCD}, 1"); I(f"s_mul_i32 s{S_NI}, s{S_NI}, 7")
I(f"s_lshr_b32 s{S_T2}, s{S_SLOT}, 2"); I(f"s_add_u32 s{S_NI}, s{S_NI}, s{S_T2}")
C("panel columns: two 64-column pieces of the 256-column block ni>>1: pieces (0,3) for even ni, (1,2) for odd ni")
if opt["il"]:
    I(f"s_and_b32 s74, s{S_NI}, 1"); I("s_lshl_b32 s75, s74, 1"); I("s_sub_u32 s75, 2, s75"); I("s_lshl_b32 s75, s75, 4")
    I(f"s_lshr_b32 s{S_T0}, s{S_NI}, 1"); I(f"s_lshl_b32 s{S_T0}, s{S_T0}, 2"); I(f"s_add_u32 s74, s74, s{S_T0}"); I("s_lshl_b32 s74, s74, 4")
else:
    I("s_mov_b32 s75, 0"); I(f"s_lshl_b32 s74, s{S_NI}, 5")
I("v_lshrrev_b32 v14, 4, v3"); I("v_mul_u32_u24 v14, s75, v14"); I("v_add3_u32 v14, v14, v3, s74")
C("v5 = q offset (64*mi+16p+8h)*14336 + 16*quad ; v6 = scale offset ; v7 = act offset (chunk E; L = +8 steps)")
I(f"s_lshl_b32 s{S_T2}, s{S_MI}, 2"); I(f"s_add_u32 s{S_T2}, s{S_T2}, s{S_P}")
I(f"s_mul_i32 s{S_T0}, s{S_T2}, {16*N*4}")
I(f"v_mul_u32_u24 v5, {8*N*4}, v4"); I("v_lshl_add_u32 v5, v14, 4, v5"); I(f"v_add_u32 v5, s{S_T0}, v5")
I(f"s_lshr_b32 s{S_T0}, s{S_T2}, 1"); I(f"s_mul_i32 s{S_T0}, s{S_T0}, {N*2}")
I("v_lshlrev_b32 v6, 3, v14"); I(f"v_add_u32 v6, s{S_T0}, v6")
I(f"s_lshl_b32 s{S_T0}, s{S_T2}, 5"); I("v_lshlrev_b32 v7, 4, v4"); I(f"v_add_u32 v7, s{S_T0}, v7")
C("v8 = image offset in chunk: (2p+h)*2048 + (i&1)*1024 + (((i>>1)^(4*(i&1)))*16)  (+ c*256)")
I(f"s_cmp_lt_u32 s{S_WV}, 4")
I("s_cbranch_scc1 L_cons")

I("s_waitcnt lgkmcnt(0)")
g.srd(S_Q, 6, K*N*4)
Q = []
def ldq(st, e):
    I(f"s_mov_b32 s{S_T0}, {(e + 512*st)*N*4}")
    I(f"buffer_load_dwordx4 v[{VQ[st]+4*e}:{VQ[st]+4*e+3}], v{VAD[st][0]}, s[{S_Q}:{S_Q+3}], s{S_T0} offen nt"); Q.append(("q", st, e))
def small(st):
    R = VR[st]
    I(f"s_mov_b32 s{S_T0}, {st*16*N*2}")
    I(f"buffer_load_dwordx2 v[{R}:{R+1}], v{VAD[st][1]}, s[{S_S}:{S_S+3}], s{S_T0} offen" + (" nt" if opt["sznt"] else ""))
    I(f"buffer_load_dwordx2 v[{R+2}:{R+3}], v{VAD[st][1]}, s[{S_Z}:{S_Z+3}], s{S_T0} offen" + (" nt" if opt["sznt"] else ""))
    I(f"buffer_load_dwordx4 v[{R+4}:{R+7}], v{VAD[st][2]}, s[{S_ACT}:{S_ACT+3}], 0 offen offset:{st*1024}" + (" nt" if opt["actnt"] else "")); Q.extend([("s", st, 0)]*3)
def wait_for(pred):
    last = max([i for i, t in enumerate(Q) if pred(t)], default=-1)
    if last >= 0: I(f"s_waitcnt vmcnt({len(Q)-1-last})")
    del Q[:last+1]
for e in range(8):
    if e == opt["smpos"]:
        g.srd(S_S, 8, 32*N*2); g.srd(S_Z, 10, 32*N*2); g.srd(S_ACT, 12, K*2); small(0)
    ldq(0, e)
I("s_barrier")
I(f"s_sub_u32 s{S_T2}, s{S_WV}, 5"); I(f"s_lshl_b32 s{S_T2}, s{S_T2}, 1"); I(f"s_and_b32 s{S_T2}, s{S_T2}, 2")
common_setup()
I(f"s_lshl_b32 s{S_T0}, s{S_NI}, 18"); I(f"v_add_u32 v24, s{S_T0}, v25")
C("v8 = image offset in chunk: (2p+h)*2048 + (i&1)*1024 + (((i>>1)^(4*(i&1)))*16)  (+ c*256)")
I(f"s_lshl_b32 s{S_T0}, s{S_P}, 12")
I("v_lshlrev_b32 v8, 11, v4"); I(f"v_add_u32 v8, s{S_T0}, v8")
I("v_and_b32 v9, 1, v3"); I("v_lshl_add_u32 v8, v9, 10, v8"); I("v_lshlrev_b32 v9, 2, v9")
I("v_lshrrev_b32 v10, 1, v3"); I("v_xor_b32 v10, v10, v9"); I("v_lshl_add_u32 v8, v10, 4, v8")
flags_to_vgpr()
def unpack(st):
    R = VR[st]; VSC = VSCs[st]
    wait_for(lambda t: t[0] == "s" and t[1] == st)
    for d in range(4):
        I(f"v_lshlrev_b32 v{VSC+2*d}, 16, v{R+d}"); I(f"v_and_b32 v{VSC+2*d+1}, 0xffff0000, v{R+d}")
    for d in range(4):
        I(f"v_lshlrev_b32 v{VSC+8+2*d}, 16, v{R+4+d}"); I(f"v_and_b32 v{VSC+9+2*d}, 0xffff0000, v{R+4+d}")
    for T in range(4): I(f"v_mul_f32 v{VSC+4+T}, -v{VSC+4+T}, v{VSC+T}")
def conv_row(st, e, after_wait=None):
    wait_for(lambda t: t == ("q", st, e))
    if after_wait: after_wait()
    q = VQ[st] + 4*e; o = VOs[st]; VSC = VSCs[st]
    for c in range(4): I(f"v_cvt_f32_i32 v{q+c}, v{q+c}")
    for c in range(4): I(f"v_fma_f32 v{q+c}, v{q+c}, v{VSC+c}, v{VSC+4+c}")
    for c in range(4): I(f"v_mul_f32 v{q+c}, v{q+c}, v{VSC+8+e}")
    if e & 1:
        for c in range(4): I(f"v_cvt_pk_bf16_f32 v{o+4*c+e//2}, v{q-4+c}, v{q+c}")
C("dequantise: w = bf16(((float)q*s - z*s) * a[k]), row by row as the loads land")
VO = 32
I(f"v_mov_b32 v{VCN}, {CNT}"); I(f"v_mov_b32 v{VTMP}, 1")
unpack(0)
for e in range(8): conv_row(0, e)
for c in range(4 if opt["est"] else 0): I(f"buffer_store_dwordx4 v[{VO+4*c}:{VO+4*c+3}], v8, s[{S_WB}:{S_WB+3}], s{S_SP} offen offset:{c*256} sc1")
for c in range(4): I(f"ds_write_b128 v8, v[{VO+4*c}:{VO+4*c+3}] offset:{BOFF + c*256}")
I("s_waitcnt lgkmcnt(0)")
keep(1)
I("s_barrier")
I("s_waitcnt vmcnt(0)")
keep(2)
I("s_mov_b64 exec, 1")
I(f"ds_add_rtn_u32 v{VTMP+1}, v{VCN}, v{VTMP}")
I("s_waitcnt lgkmcnt(0)")
I(f"v_readfirstlane_b32 s{S_T0}, v{VTMP+1}")
I(f"s_cmp_lg_u32 s{S_T0}, 3")
I("s_cbranch_scc1 L_nf0")
I(f"s_lshl_b32 s{S_T1}, 1, s{S_MI}")
I(f"s_mov_b32 exec_lo, s{S_T1}")
I(f"buffer_store_dword v{VF0}, v{VFA}, s[{S_WB}:{S_WB+3}], 0 offen sc1")
g.LBL("L_nf0")
I("s_mov_b64 exec, -1")
if opt["pdel"]: I("s_barrier")
I(f"s_mov_b32 s{S_STG}, {STG}")
I(f"s_mov_b32 s{S_U}, 2")
I(f"s_cmp_eq_u32 s{S_WV}, 4")
I("s_cbranch_scc1 L_bload")
I(f"s_cmp_eq_u32 s{S_WV}, 7")
I("s_cbranch_scc1 L_copy")
C("waves 5,6: A tiles")
I(f"s_lshl_b32 s{S_OA}, s{S_MI}, 7"); I(f"s_add_u32 s{S_OA}, s{S_OA}, 1024"); ld_A(16)
g.LBL("L_aloop")
step_of_pos(); next_stage(); I(f"s_lshl_b32 s{S_OA}, s{S_CS}, 7"); ld_A(16)
I("s_waitcnt vmcnt(16)")
I("s_barrier")
I(f"s_add_u32 s{S_U}, s{S_U}, 1")
I(f"s_cmp_lt_u32 s{S_U}, 16")
I("s_cbranch_scc1 L_aloop")
I("s_waitcnt vmcnt(0)")
I("s_barrier")
flush_keeps([0, 1, 2])
I("s_endpgm")

g.LBL("L_copy")
C("wave 7: copy the L image (stage 1, complete at B_1) out to ws, publish it, end")
I(f"v_add_u32 v26, {STG + BOFF}, v25")
I(f"s_add_u32 s{S_SP}, s{S_SP}, {8*16384}")
I("s_barrier")
for j in range(16): I(f"ds_read_b128 v[{128+4*j}:{131+4*j}], v26 offset:{j*1024}")
I("s_waitcnt lgkmcnt(0)")
I("s_barrier")
for jj in range(4):
    for j in range(4): I(f"buffer_store_dwordx4 v[{128+16*jj+4*j}:{131+16*jj+4*j}], v25, s[{S_WB}:{S_WB+3}], s{S_SP} offen offset:{j*1024} sc1")
    I(f"s_add_u32 s{S_SP}, s{S_SP}, 4096")
    if jj == 1: I("s_barrier")
I("s_barrier")
I("s_waitcnt vmcnt(0)")
I(f"s_lshl_b32 s{S_T1}, 256, s{S_MI}")
I(f"s_mov_b32 exec_lo, s{S_T1}"); I("s_mov_b32 exec_hi, 0")
I(f"buffer_store_dword v{VF0}, v{VFA}, s[{S_WB}:{S_WB+3}], 0 offen sc1")
I("s_mov_b64 exec, -1")
flush_keeps([0, 1, 2])
I("s_endpgm")

g.LBL("L_bload")
C("wave 4: S_U next position to issue, S_PB last barrier passed, S_FL mask of published steps")
I(f"s_mov_b32 s{S_PB}, 0"); I(f"s_mov_b32 s{S_FL}, 0"); I(f"s_mov_b32 s{S_NP}, 0")
if opt["sp"]:
    C("first looks at the flags go through the scalar path (they do not queue behind the vector loads)")
    step_of_pos()
    I("s_mov_b32 s81, 0")
    I("s_mov_b64 exec, 0xffff")
    g.LBL("L_spoll")
    I(f"s_load_dwordx16 s[20:35], s[82:83], {FL_OFF - FB_OFF} glc")
    I("s_waitcnt lgkmcnt(0)")
    for l in range(8): I(f"v_writelane_b32 v28, s{20+l}, {l}")
    I(f"v_cmp_eq_u32 vcc, v28, v{VF0}")
    I(f"s_and_b32 s{S_FL}, vcc_lo, 0xff")
    I(f"s_bitcmp1_b32 s{S_FL}, s{S_CS}")
    I("s_cbranch_scc1 L_spx")
    I("s_add_u32 s81, s81, 1"); I(f"s_cmp_lt_u32 s81, {opt['sp']}"); I("s_cbranch_scc1 L_spoll")
    g.LBL("L_spx")
    I("s_mov_b64 exec, -1")
    pass
g.LBL("L_sm")
I(f"s_mov_b32 s{S_PEND}, 0")
I(f"s_cmp_ge_u32 s{S_U}, 16")
I("s_cbranch_scc1 L_trybar")
step_of_pos()
I(f"s_bitcmp1_b32 s{S_FL}, s{S_CS}")
I("s_cbranch_scc0 L_dopoll")
I(f"s_add_u32 s{S_T0}, s{S_PB}, 2")
I(f"s_cmp_gt_u32 s{S_U}, s{S_T0}")
I("s_cbranch_scc1 L_trybar")
keep_if(S_U, 2, 5); keep_if(S_U, 8, 6)
next_stage()
I(f"s_lshl_b32 s{S_OB}, s{S_CS}, 14")
for jj in range(4):
    I(f"s_add_u32 m0, s{S_STG}, {BOFF + jj*4096}")
    if jj: I(f"s_add_u32 s{S_OB}, s{S_OB}, 4096")
    else: I("s_nop 0")
    for j in range(4): I(f"buffer_load_dwordx4 v24, s[{S_WB}:{S_WB+3}], s{S_OB} offen offset:{j*1024}" + (" sc1" if opt["bsc"] else "") + " lds")
I(f"s_add_u32 s{S_U}, s{S_U}, 1")
I("s_branch L_sm")
g.LBL("L_dopoll")
I("s_mov_b64 exec, 0xffff")
I(f"buffer_load_dword v28, v{VFA}, s[{S_WB}:{S_WB+3}], 0 offen sc1")
I(f"s_add_u32 s{S_NP}, s{S_NP}, 1")
I(f"s_mov_b32 s{S_PEND}, 1")
if opt["npoll"]:
    I(f"s_cmp_le_u32 s{S_NP}, {opt['npoll']}")
    I("s_cbranch_scc1 L_nobar")
g.LBL("L_trybar")
I(f"s_sub_u32 s{S_T0}, s{S_U}, s{S_PB}")
I(f"s_cmp_le_u32 s{S_T0}, 1")
I("s_cbranch_scc1 L_nobar")
I(f"s_lshl_b32 s{S_T0}, s{S_T0}, 1"); I(f"s_add_u32 s{S_T0}, s{S_T0}, s{S_PEND}")
I(f"s_cmp_eq_u32 s{S_T0}, 6"); I("s_cbranch_scc1 L_w16")
I(f"s_cmp_eq_u32 s{S_T0}, 7"); I("s_cbranch_scc1 L_w17")
I(f"s_cmp_eq_u32 s{S_T0}, 5"); I("s_cbranch_scc1 L_w1")
I("s_waitcnt vmcnt(0)")
g.LBL("L_w1")
I("s_waitcnt vmcnt(1)")
g.LBL("L_w16")
I("s_waitcnt vmcnt(16)")
g.LBL("L_w17")
I("s_waitcnt vmcnt(17)")
I("s_barrier")
I(f"s_add_u32 s{S_PB}, s{S_PB}, 1")
I(f"s_cmp_ge_u32 s{S_PB}, 15")
I("s_cbranch_scc1 L_bdone")
g.LBL("L_nobar")
I(f"s_cmp_eq_u32 s{S_PEND}, 0")
I("s_cbranch_scc1 L_sm")
I(f"s_cmp_lt_u32 s{S_NP}, 0x40000")
I("s_cbranch_scc1 L_waitpoll")
I(f"s_mov_b32 s{S_FL}, 0xffff")
g.LBL("L_waitpoll")
I("s_waitcnt vmcnt(0)")
g.LBL("L_gotpoll")
I(f"v_cmp_eq_u32 vcc, v28, v{VF0}")
I(f"s_or_b32 s{S_FL}, s{S_FL}, vcc_lo")
I("s_mov_b64 exec, -1")
I("s_branch L_sm")
g.LBL("L_bdone")
C("every sharer has published, hence read the base words: re-arm this WG's two words (base := flag value)")
I(f"s_lshl_b32 s{S_T1}, 0x101, s{S_MI}")
I(f"s_mov_b32 exec_lo, s{S_T1}"); I("s_mov_b32 exec_hi, 0")
I(f"buffer_store_dword v{VF0}, v29, s[{S_WB}:{S_WB+3}], 0 offen sc1")
I("s_mov_b64 exec, -1")
if opt["stamps"]: I("s_waitcnt lgkmcnt(0)"); I(f"s_mov_b32 s98, s{S_NP}" if not opt["sp"] else "s_mov_b32 s98, s81")
flush_keeps([0, 1, 2, 5, 6, 7])
I("s_endpgm")

g.LBL("L_cons")
if opt["tm"] >= 0: I("s_waitcnt lgkmcnt(0)"); I("s_mov_b32 s81, s100")
I("v_mov_b32 v14, 0"); I(f"v_mov_b32 v{VCN}, {CNT}")
I(f"ds_write_b32 v{VCN}, v14")
I("v_mov_b32 v100, v5"); I("v_mov_b32 v101, v6"); I("v_mov_b32 v102, v7")
if opt["half"]:
    I(f"s_and_b32 s{S_T0}, s{S_MI}, 1"); I(f"s_lshl_b32 s{S_T0}, s{S_T0}, 30"); I(f"v_add_u32 v100, s{S_T0}, v100")
I(f"s_lshl_b32 s{S_T0}, s{S_P}, 12")
I("v_lshlrev_b32 v8, 11, v4"); I(f"v_add_u32 v8, s{S_T0}, v8")
I("v_and_b32 v9, 1, v3"); I("v_lshl_add_u32 v8, v9, 10, v8"); I("v_lshlrev_b32 v9, 2, v9")
I("v_lshrrev_b32 v10, 1, v3"); I("v_xor_b32 v10, v10, v9"); I("v_lshl_add_u32 v8, v10, 4, v8")
I(f"v_add_u32 v103, {STG}, v8")
C("A DMA offsets")
I(f"s_lshl_b32 s{S_T0}, s{S_P}, 6"); I(f"s_lshl_b32 s{S_T1}, s{S_MI}, 8"); I(f"s_add_u32 s{S_T0}, s{S_T0}, s{S_T1}"); I(f"s_lshl_b32 s{S_T0}, s{S_T0}, 11")
I("v_lshrrev_b32 v11, 3, v2"); I("v_lshlrev_b32 v11, 11, v11"); I(f"v_add_u32 v11, s{S_T0}, v11")
I("v_and_b32 v12, 7, v2"); I("v_lshrrev_b32 v13, 4, v2"); I("v_xor_b32 v12, v12, v13"); I("v_xor_b32 v13, 4, v12")
I("v_lshl_add_u32 v12, v12, 4, v11"); I("v_lshl_add_u32 v13, v13, 4, v11")
for j in range(8): I(f"v_add_u32 v{VOA+j}, {8*j*2048 - (j%4)*1024}, v{12 + (j&1)}")
I(f"s_lshl_b32 s{S_MA}, s{S_P}, 13")
I("s_waitcnt lgkmcnt(0)")
g.srd(S_X, 4, M*K*2); g.srd(S_Q, 6, K*N*4); g.srd(S_S, 8, 32*N*2); g.srd(S_Z, 10, 32*N*2); g.srd(S_ACT, 12, K*2)
I(f"s_mov_b32 s{S_STG}, 0"); I(f"s_lshl_b32 s{S_OA}, s{S_MI}, 7")
I("s_barrier")
Q[:] = []
LH = opt["lh"]
if opt["a0f"]: ld_A(); Q.extend([("A", 0, 0)]*8)
if opt["smL"]: small(1)
for e in range(LH): ldq(1, e)
if not opt["a0f"]: ld_A(); Q.extend([("A", 0, 0)]*8)
stamp_setup()
VA0 = 104; VA = 108; VOUT = 112
I("v_lshrrev_b32 v3, 4, v2"); I("v_and_b32 v4, 15, v2")
I("v_lshlrev_b32 v5, 7, v4"); I(f"v_add_u32 v5, s{S_MA}, v5"); I("v_bfe_u32 v6, v4, 1, 3")
for t in range(2):
    I(f"v_add_u32 v10, {4*t}, v3"); I("v_xor_b32 v10, v10, v6"); I(f"v_lshl_add_u32 v{VA0+t}, v10, 4, v5")
I("v_lshlrev_b32 v10, 11, v3"); I(f"v_add_u32 v10, {BOFF}, v10")
I(f"v_lshl_add_u32 v{VA0+2}, v4, 4, v10")
I("v_xor_b32 v11, 4, v4"); I(f"v_lshl_add_u32 v{VA0+3}, v11, 4, v10")
for t in range(4): I(f"v_mov_b32 v{VA+t}, v{VA0+t}")
I(f"s_lshl_b32 s{S_T0}, s{S_P}, 6"); I(f"s_lshl_b32 s{S_T1}, s{S_MI}, 8"); I(f"s_add_u32 s{S_T0}, s{S_T0}, s{S_T1}")
I(f"s_mul_i32 s{S_T0}, s{S_T0}, {N*2}"); I(f"s_lshl_b32 s{S_T1}, s74, 3"); I(f"s_add_u32 s{S_T0}, s{S_T0}, s{S_T1}")
I(f"v_mul_u32_u24 v10, {4*N*2}, v3"); I("v_lshl_add_u32 v10, v4, 4, v10")
I("v_lshrrev_b32 v11, 3, v4"); I("v_mul_u32_u24 v11, s75, v11"); I("v_lshl_add_u32 v10, v11, 3, v10"); I(f"v_add_u32 v{VOUT}, s{S_T0}, v10")
g.srd(S_OUT, 14, M*N*2)
ACC = 128
def acc(a, T): return ACC + (a * 8 + T) * 4
FS = [8, 56]
def fA(s, a): return FS[s] + 4 * a
def fB(s, T): return FS[s] + 16 + 4 * T
def rdA(s, a, t): I(f"ds_read_b128 v[{fA(s,a)}:{fA(s,a)+3}], v{VA+t} offset:{a*2048}")
def rdB(s, T, t): I(f"ds_read_b128 v[{fB(s,T)}:{fB(s,T)+3}], v{VA+2+(T>>2)} offset:{t*8192 + T*256}")
def mfma(s, a, T, first=False):
    d = acc(a, T)
    I(f"v_mfma_f32_16x16x32_bf16 v[{d}:{d+3}], v[{fA(s,a)}:{fA(s,a)+3}], v[{fB(s,T)}:{fB(s,T)+3}], " + ("0" if first else f"v[{d}:{d+3}]"))
MORD = []
for a in range(4): MORD += [(a, T) for T in (range(8) if a % 2 == 0 else range(7, -1, -1))]
def reads(s, t):
    return [lambda: rdA(s,0,t)] + [(lambda T: (lambda: rdB(s,T,t)))(T) for T in range(8)] + [(lambda a: (lambda: rdA(s,a,t)))(a) for a in range(1,4)]
BP = opt["barpos"]
def half0(first):
    I("s_waitcnt lgkmcnt(0)")
    rd = reads(1, 1)
    for idx, (a, T) in enumerate(MORD):
        mfma(0, a, T, first)
        if idx < len(rd): rd[idx]()
        if idx == 16: next_stage()
        if idx == 18: I(f"s_add_u32 s{S_U}, s{S_U}, 1")
        if idx == 20:
            for tt in range(4): I(f"v_add_u32 v{VA+tt}, s{S_STG}, v{VA0+tt}")
I("s_barrier")
if not opt["smL"]: small(1)
for e in range(LH, 8): ldq(1, e)
wait_for(lambda t: t[0] == "A")
keep(1)
if opt["stamps"]: I("s_memtime s[64:65]")
C("position 0 with one fragment set (the other registers receive the L chunk)")
for t in range(2):
    for r in reads(0, t): r()
    I("s_waitcnt lgkmcnt(0)")
    for (a, T) in MORD: mfma(0, a, T, t == 0)
if opt["pdel"]: I("s_barrier")
unpack(1)
for e in range(8): conv_row(1, e)
for c in range(4): I(f"ds_write_b128 v103, v[{VO+4*c}:{VO+4*c+3}] offset:{BOFF + c*256}")
keep(0)
if opt["prio"]: I(f"s_setprio {opt['prio']}")
I(f"s_mov_b32 s{S_U}, 1"); I(f"s_mov_b32 s{S_STG}, {STG}")
for tt in range(4): I(f"v_add_u32 v{VA+tt}, s{S_STG}, v{VA0+tt}")
I("s_waitcnt lgkmcnt(0)")
I("s_barrier")
keep(4)
for r in reads(0, 0): r()
if not opt["tail2"]:
    g.LBL("L_cloop")
    half0(False)
    I("s_waitcnt lgkmcnt(0)")
    rd = reads(0, 0)
    for idx, (a, T) in enumerate(MORD):
        mfma(1, a, T)
        if idx == BP:
            I(f"s_cmp_ge_u32 s{S_U}, 16")
            I("s_cbranch_scc1 L_ctail")
            I("s_barrier")
            keep_if(S_U, 2, 5); keep_if(S_U, 9, 7)
        if idx > BP and idx - BP - 1 < len(rd): rd[idx-BP-1]()
    I("s_branch L_cloop")
    g.LBL("L_ctail")
    def epi_ops(a):
        ops = []
        for r in range(4):
            d = 8 + 4 * ((a*4 + r) % 12)
            for p in range(4): ops.append(f"v_cvt_pk_bf16_f32 v{d+p}, v{acc(a,2*p)+r}, v{acc(a,2*p+1)+r}")
            ops.append(f"s_mov_b32 s{S_T0}, {(16*a+r)*N*2}")
            ops.append(f"buffer_store_dwordx4 v[{d}:{d+3}], v{VOUT}, s[{S_OUT}:{S_OUT+3}], s{S_T0} offen{OSTF}")
        return ops
    pend = []; done_a = set()
    for idx, (a, T) in enumerate(MORD):
        if idx <= BP: continue
        mfma(1, a, T)
        if opt["epi"]:
            for ap in range(3):
                if ap not in done_a and idx >= 8*ap + 7 + 8:
                    pend += epi_ops(ap); done_a.add(ap)
            for o in pend[:3]: I(o)
            pend = pend[3:]
    keep(2)
    if opt["stamps"]: I("s_memtime s[60:61]")
    for o in pend: I(o)
    rest = [a for a in range(4) if a not in done_a]
    for a in rest[:-1]:
        for o in epi_ops(a): I(o)
    I("s_nop 7")
    for o in epi_ops(rest[-1]): I(o)
else:
    R = opt["R"]
    PH = {0: [[0,1],[2,3]], 1: [[0,1],[2],[3]], 2: [[0,1,2],[3]]}[opt["ph"]]
    g.LBL("L_cloop")
    half0(False)
    I("s_waitcnt lgkmcnt(0)")
    rd = reads(0, 0)
    for idx, (a, T) in enumerate(MORD):
        mfma(1, a, T)
        if idx == BP:
            I("s_barrier")
            if opt["cyc"]:
                I(f"s_cmp_lg_u32 s{S_U}, 5"); I("s_cbranch_scc1 L_cy1"); I("s_memtime s[64:65]"); keep(5); g.LBL("L_cy1")
                I(f"s_cmp_lg_u32 s{S_U}, 13"); I("s_cbranch_scc1 L_cy2"); I("s_memtime s[60:61]"); keep(7); g.LBL("L_cy2")
            else:
                keep_if(S_U, 2, 5); keep_if(S_U, 9, 7)
            I(f"s_cmp_ge_u32 s{S_U}, {16-R}")
            I("s_cbranch_scc1 L_ctail")
        if idx > BP and idx - BP - 1 < len(rd): rd[idx-BP-1]()
    I("s_branch L_cloop")
    g.LBL("L_ctail")
    C("last positions are resident together: finish some row tiles early and store them under the remaining MFMAs")
    VP = [VA, 116, 120]
    LQ = []
    def t_read(kind, s_, slot, idx_, pos, t):
        base = VP[pos]
        if kind == "A": I(f"ds_read_b128 v[{fA(s_,slot)}:{fA(s_,slot)+3}], v{base+t} offset:{idx_*2048}")
        else: I(f"ds_read_b128 v[{fB(s_,idx_)}:{fB(s_,idx_)+3}], v{base+2+(idx_>>2)} offset:{t*8192 + idx_*256}")
        LQ.append((kind, s_, slot if kind == "A" else idx_))
    def t_need(ids):
        last = max([i for i, x in enumerate(LQ) if x in ids], default=-1)
        if last >= 0:
            I(f"s_waitcnt lgkmcnt({min(15, len(LQ)-1-last)})"); del LQ[:last+1]
    subs = [(tiles, pos, t) for tiles in PH for pos in range(R) for t in range(2)]
    def sub_reads(k):
        tiles, pos, t = subs[k]; s_ = k & 1
        return [("A", s_, 0, tiles[0], pos, t)] + [("B", s_, 0, T, pos, t) for T in range(8)] + [("A", s_, sl, tiles[sl], pos, t) for sl in range(1, len(tiles))]
    TMP = [fA(0,3), fA(1,3), 124, 0, 4] + ([fA(0,2), fA(1,2)] if opt["ph"] != 2 else [])
    ne = [0]
    def epi_ops(a):
        ops = []
        for r in range(4):
            d = TMP[ne[0] % len(TMP)]; ne[0] += 1
            for p in range(4): ops.append(f"v_cvt_pk_bf16_f32 v{d+p}, v{acc(a,2*p)+r}, v{acc(a,2*p+1)+r}")
            ops.append(f"s_mov_b32 s{S_T0}, {(16*a+r)*N*2}")
            ops.append(f"buffer_store_dwordx4 v[{d}:{d+3}], v{VOUT}, s[{S_OUT}:{S_OUT+3}], s{S_T0} offen{OSTF}")
        return ops
    C("rest of the last ordinary position")
    nxt = sub_reads(0)
    for idx, (a, T) in enumerate(MORD):
        if idx <= BP: continue
        mfma(1, a, T)
        if nxt: t_read(*nxt.pop(0))
        for pz in range(1, R):
            if idx == 25 + 2*pz: next_stage()
            if idx == 26 + 2*pz:
                for tt in range(4): I(f"v_add_u32 v{VP[pz]+tt}, s{S_STG}, v{VA0+tt}")
    assert not nxt
    seq = []
    NS = len(subs)
    for k, (tiles, pos, t) in enumerate(subs):
        if opt["merge"] and k == NS - 2 and len(tiles) == 2:
            seq += [(k, 0, T) for T in range(8)] + [(k+1, 0, T) for T in range(8)] + [(k, 1, T) for T in range(8)] + [(k+1, 1, T) for T in range(8)]
            break
        for sl in range(len(tiles)):
            seq += [(k, sl, T) for T in (range(8) if sl % 2 == 0 else range(7, -1, -1))]
    last_use = {}
    for i, (k, sl, T) in enumerate(seq): last_use[subs[k][0][sl]] = i
    first_of = {}
    for i, (k, sl, T) in enumerate(seq): first_of.setdefault(k, i)
    pend = []; nxt = []; stored = set()
    for i, (k, sl, T) in enumerate(seq):
        s_ = k & 1; tiles, pos, t = subs[k]
        t_need([("A", s_, sl), ("B", s_, T)])
        d = acc(tiles[sl], T)
        I(f"v_mfma_f32_16x16x32_bf16 v[{d}:{d+3}], v[{fA(s_,sl)}:{fA(s_,sl)+3}], v[{fB(s_,T)}:{fB(s_,T)+3}], v[{d}:{d+3}]")
        if first_of[k] == i and k + 1 < NS:
            assert not nxt
            nxt = sub_reads(k+1)
            if k + 1 < 2*R and (k + 1) % 2 == 0: I("s_barrier")
        nrd = 2 if (len(tiles) == 1 or (opt["merge"] and k == NS - 2)) else 1
        if first_of[k] != i or nrd == 2:
            for _ in range(nrd):
                if nxt: t_read(*nxt.pop(0))
        for a in range(4):
            if a not in stored and i >= last_use[a] + 8:
                pend += epi_ops(a); stored.add(a)
        n = opt["eper"] if not nxt else 1
        for o in pend[:n]: I(o)
        pend = pend[n:]
    keep(2)
    if opt["stamps"] and not opt["cyc"]: I("s_memtime s[60:61]")
    for o in pend: I(o)
    I("s_nop 7")
    for a in range(4):
        if a not in stored:
            for o in epi_ops(a): I(o)
if opt["stamps"]:
    I("s_waitcnt vmcnt(0)"); keep(3); I("s_waitcnt lgkmcnt(0)")
    I("s_sub_u32 s96, s60, s64")
    flush_keeps([0, 1, 2, 3, 4, 5, 6, 7])
    if opt["tm"] >= 0:
        C("diagnostic build only: stretch the launch to mult * (event - start)")
        I(f"s_sub_u32 s82, s{kreg(opt['tm'])}, s81"); I(f"s_mul_i32 s82, s82, {opt['mult']}"); I("s_min_u32 s82, s82, 50000")
        g.LBL("L_spin")
        I("s_sleep 4"); I("s_memrealtime s[60:61]"); I("s_waitcnt lgkmcnt(0)")
        I("s_sub_u32 s83, s60, s81"); I("s_cmp_lt_u32 s83, s82"); I("s_cbranch_scc1 L_spin")
I("s_endpgm")

g.LBL("L_help")
if opt["cpf"]:
    C("pull the kernel's code into this die's L2 (range-checked)")
    I("s_getpc_b64 s[56:57]")
    g.LBL("L_pc")
    I(f"s_sub_u32 s56, s56, L_pc-{KN}"); I("s_subb_u32 s57, s57, 0")
    I(f"s_mov_b32 s58, L_codeend-{KN}"); I("s_mov_b32 s59, 0x00020000")
    I("v_lshlrev_b32 v10, 7, v0")
    if opt["cpf"] == 2:
        I(f"s_cmp_eq_u32 s{S_SLOT}, 28"); I("s_cselect_b32 s58, s58, 0")
    if opt["cpf"] == 3:
        C("each of the die's four helpers takes every fourth line")
        I("v_lshlrev_b32 v10, 9, v0"); I(f"s_and_b32 s{S_T0}, s{S_SLOT}, 3"); I(f"s_lshl_b32 s{S_T0}, s{S_T0}, 7"); I(f"v_add_u32 v10, s{S_T0}, v10")
    I("buffer_load_dword v9, v10, s[56:59], 0 offen")
I(f"s_sub_u32 s{S_SLOT}, s{S_SLOT}, 28")
C("pass 0: tile mi=4*(xcd&1)+hs, rows 64*(wave&3)+lane, line mi (waves 0-3) / 8+mi (waves 4-7)")
I(f"s_and_b32 s{S_MI}, s{S_XCD}, 1"); I(f"s_lshl_b32 s{S_MI}, s{S_MI}, 2"); I(f"s_add_u32 s{S_MI}, s{S_MI}, s{S_SLOT}")
I(f"s_lshl_b32 s{S_T0}, s{S_MI}, 8"); I(f"s_lshl_b32 s{S_T1}, s{S_P}, 6"); I(f"s_add_u32 s{S_T0}, s{S_T0}, s{S_T1}")
I(f"s_lshl_b32 s{S_T0}, s{S_T0}, 11")
I("v_lshlrev_b32 v5, 11, v2"); I(f"v_add_u32 v5, s{S_T0}, v5")
I(f"s_lshr_b32 s{S_T0}, s{S_WV}, 2"); I(f"s_lshl_b32 s{S_T0}, s{S_T0}, 3"); I(f"s_add_u32 s{S_T0}, s{S_T0}, s{S_MI}"); I(f"s_lshl_b32 s{S_OA}, s{S_T0}, 7")
if not opt["hm"]:
    C("passes 1,2: rows 1024*(xcd&1) + 256*(xcd>>1) + 64*hs + 8*wave + (l>>3), line (l&7), then +8")
    I(f"s_and_b32 s{S_T0}, s{S_XCD}, 1"); I(f"s_lshl_b32 s{S_T0}, s{S_T0}, 10")
    I(f"s_lshr_b32 s{S_T1}, s{S_XCD}, 1"); I(f"s_lshl_b32 s{S_T1}, s{S_T1}, 8"); I(f"s_add_u32 s{S_T0}, s{S_T0}, s{S_T1}")
    I(f"s_lshl_b32 s{S_T1}, s{S_SLOT}, 6"); I(f"s_add_u32 s{S_T0}, s{S_T0}, s{S_T1}")
    I(f"s_lshl_b32 s{S_T1}, s{S_WV}, 3"); I(f"s_add_u32 s{S_T0}, s{S_T0}, s{S_T1}")
    I(f"s_lshl_b32 s{S_T0}, s{S_T0}, 11")
    I("v_lshrrev_b32 v11, 3, v2"); I("v_lshlrev_b32 v11, 11, v11"); I("v_and_b32 v12, 7, v2"); I("v_lshl_add_u32 v11, v12, 7, v11")
    I(f"v_add_u32 v11, s{S_T0}, v11")
    I("s_mov_b32 s72, 0"); I("s_mov_b32 s73, 1024")
else:
    C("passes 1,2 (each line once chip-wide, in order of need): 64 rows per helper (lane = row) of tile 4*(xcd&1)+(xcd>>1); wave w: positions w+2, w+10")
    I(f"s_and_b32 s{S_MI}, s{S_XCD}, 1"); I(f"s_lshl_b32 s{S_MI}, s{S_MI}, 2"); I(f"s_lshr_b32 s{S_T1}, s{S_XCD}, 1"); I(f"s_add_u32 s{S_MI}, s{S_MI}, s{S_T1}")
    I(f"s_lshl_b32 s{S_T0}, s{S_MI}, 8"); I(f"s_lshl_b32 s{S_T1}, s{S_SLOT}, 6"); I(f"s_add_u32 s{S_T0}, s{S_T0}, s{S_T1}"); I(f"s_lshl_b32 s{S_T2}, s{S_T0}, 11")
    I("v_lshlrev_b32 v11, 11, v2"); I(f"v_add_u32 v11, s{S_T2}, v11")
    I(f"s_add_u32 s{S_U}, s{S_WV}, 2"); step_of_pos(); I(f"s_lshl_b32 s72, s{S_CS}, 7")
    I(f"s_add_u32 s{S_U}, s{S_WV}, 10"); step_of_pos(); I(f"s_lshl_b32 s73, s{S_CS}, 7")
    I(f"s_cmp_ge_u32 s{S_WV}, 6"); I("s_cselect_b32 s73, 0x40000000, s73")
I("s_waitcnt lgkmcnt(0)")
g.srd(S_X, 4, M*K*2)
stamp_setup()
if opt["hp0"] == 2:
    I(f"s_cmp_lt_u32 s{S_WV}, 4"); I(f"s_cselect_b32 s{S_OA}, 0x40000000, s{S_OA}")
if opt["hp0"]:
    I(f"buffer_load_dword v15, v5, s[{S_X}:{S_X+3}], s{S_OA} offen")
    if opt["hdel"]: I("s_waitcnt vmcnt(0)")
    keep(3)
    I("s_barrier")
else: keep(3)
if opt["hm"] >= 2:
    I(f"s_cmp_lt_u32 s{S_WV}, {opt['hm']}"); I("s_cbranch_scc1 L_h1"); I("s_barrier"); g.LBL("L_h1")
I(f"buffer_load_dword v14, v11, s[{S_X}:{S_X+3}], s72 offen")
if opt["hm"] >= 2:
    I(f"s_cmp_ge_u32 s{S_WV}, {opt['hm']}"); I("s_cbranch_scc1 L_h2"); I("s_barrier"); g.LBL("L_h2")
if opt["hdel"]: I("s_waitcnt vmcnt(0)"); keep(1)
I("s_barrier")
I(f"buffer_load_dword v13, v11, s[{S_X}:{S_X+3}], s73 offen")
if opt["stamps"]:
    if not opt["hdel"]: I("s_waitcnt vmcnt(1)"); keep(1)
    I("s_waitcnt vmcnt(0)"); keep(2); flush_keeps([0, 1, 2, 3])
g.LBL("L_end")
I("s_endpgm")
g.LBL("L_codeend")

out = HEADER + f"""; Launch geometry (generated by my generator script gen26.py)
; @launch grid=({NWG},1,1) block=(512,1,1) lds={LDS_BYTES}
.amdgcn_target "amdgcn-amd-amdhsa--gfx950"
.text
""" + kernel_text(KN, g.text()) + """.section .rodata,"a"
""" + kd(KN, 256, 102)
open(sys.argv[1], "w").write(out)
print(LDS_BYTES, len(g.L))
```

```python
import sys
from asmlib import *
opt = dict(stamps=0, prio=1, barpos=14, ostf=3, cpf=1, hp0=1, hdel=0, npoll=1, epi=1, prepoll=1, smpos=2, lag=0, a0mode=0, lh=2, pdel=1, hx=1, est=1, a0f=0, smL=0, sp=0, hm=1, il=1, tail2=1, R=2, ph=0, tm=-1, cyc=0, cw=0, unr=1, mult=5, merge=1, eper=2, half=0, bsc=1, actnt=0, sznt=0)
for a in sys.argv[2:]:
    k, v = a.split("="); assert k in opt, k; opt[k] = int(v)
g = Asm(); I = g.I; C = g.C
NWG = 256
STG = 49152; NSTG = 3; BOFF = 32768
CNT = STG * NSTG
LDS_BYTES = CNT + 64
WB_OFF = (1 << 20) if opt["stamps"] else 0
WB_BYTES = 28 * 16 * 16384
FB_OFF = WB_BYTES
FL_OFF = FB_OFF + 28 * 128
WS_BYTES = FL_OFF + 28 * 128
FKEY = 0x9e3779b1
OSTF = {0: "", 1: " sc1", 2: " sc0 sc1", 3: " nt", 4: " sc1 nt"}[opt["ostf"]]
S_X, S_Q, S_S, S_Z, S_ACT, S_OUT, S_WB = 16, 20, 24, 28, 32, 36, 68
S_WV = 44; S_MI = 45; S_NI = 46; S_T0 = 47; S_T1 = 48; S_U = 49; S_T2 = 55
S_OB = 50; S_OA = 51; S_STG = 52; S_MA = 53; S_XCD = 54; S_SLOT = 63; S_P = 66; S_CS = 67; S_PB = 76; S_NP = 77; S_FL = 78; S_PEND = 79; S_SP = 80
S_F = 84
VQ = [128, 56]; VR = [160, 88]; VSCs = [168, 8]; VOs = [32, 32]; VOA = 16
VAD = [(5, 6, 7), (100, 101, 102)]
VFA = 113; VF0 = 114; VCN = 115; VTMP = 116

def kreg(idx): return 100 if idx == 0 else 84 + 2*idx
def stamp_setup():
    if not opt["stamps"]: return
    g.srd(56, 42, 1 << 20)
    I("s_lshl_b32 s62, s2, 3"); I(f"s_add_u32 s62, s62, s{S_WV}"); I("s_lshl_b32 s62, s62, 6")
def keep(idx):
    if opt["tm"] in (2, 3) and idx not in (0, opt["tm"]): return
    if opt["stamps"]: I(f"s_memrealtime s[{kreg(idx)}:{kreg(idx)+1}]")
NK = [0]
def keep_if(reg, val, idx):
    if not opt["stamps"] or opt["tm"] in (2, 3): return
    NK[0] += 1
    I(f"s_cmp_lg_u32 s{reg}, {val}"); I(f"s_cbranch_scc1 L_k{NK[0]}"); keep(idx); g.LBL(f"L_k{NK[0]}")
def flush_keeps(idxs, vt=8):
    if not opt["stamps"] or opt["tm"] >= 0: return
    I("s_waitcnt lgkmcnt(0)")
    for idx in idxs:
        I(f"v_mov_b32 v{vt}, s{kreg(idx)}"); I(f"v_mov_b32 v{vt+1}, 0"); I(f"v_mov_b32 v{vt+2}, s62")
        I(f"buffer_store_dwordx2 v[{vt}:{vt+1}], v{vt+2}, s[56:59], 0 offen offset:{idx*8}")
def next_stage():
    I(f"s_add_u32 s{S_STG}, s{S_STG}, {STG}"); I(f"s_cmp_ge_u32 s{S_STG}, {STG*NSTG}"); I(f"s_cselect_b32 s{S_STG}, 0, s{S_STG}")
def ld_A(n=8):
    for j in range(n):
        if j % 4 == 0:
            if j == 0: I(f"s_add_u32 m0, s{S_STG}, s{S_MA}")
            else:      I("s_add_u32 m0, m0, 4096")
            if j == 8: I(f"s_add_u32 s{S_OA}, s{S_OA}, {64*2048}")
            else: I("s_nop 0")
        I(f"buffer_load_dwordx4 v{VOA+j%8}, s[{S_X}:{S_X+3}], s{S_OA} offen offset:{(j%4)*1024} lds")
def step_of_pos():
    I(f"s_add_u32 s{S_T0}, s{S_U}, s{S_MI}"); I(f"s_add_u32 s{S_CS}, s{S_T0}, 7"); I(f"s_and_b32 s{S_CS}, s{S_CS}, 7")
    I(f"s_and_b32 s{S_T0}, s{S_T0}, 7"); I(f"s_or_b32 s{S_T0}, s{S_T0}, 8")
    I(f"s_cmp_ge_u32 s{S_U}, 9")
    I(f"s_cselect_b32 s{S_CS}, s{S_T0}, s{S_CS}")
def common_setup():
    I(f"s_add_u32 s{S_WB}, s42, {WB_OFF}"); I(f"s_addc_u32 s{S_WB+1}, s43, 0"); I(f"s_mov_b32 s{S_WB+2}, {WS_BYTES}"); I(f"s_mov_b32 s{S_WB+3}, 0x00020000")
    C("hand-off words: chunk published <=> flag == base + KEY; base as found at entry (scalar path)")
    I(f"s_lshl_b32 s{S_T0}, s{S_NI}, 7"); I(f"s_add_u32 s{S_T0}, s{S_T0}, {FB_OFF}")
    I(f"s_add_u32 s82, s{S_WB}, s{S_T0}"); I(f"s_addc_u32 s83, s{S_WB+1}, 0")
    I(f"s_load_dwordx16 s[{S_F}:{S_F+15}], s[82:83], 0")
    I("v_and_b32 v29, 15, v2"); I("v_lshlrev_b32 v29, 2, v29"); I(f"v_add_u32 v29, s{S_T0}, v29")
    I(f"v_add_u32 v{VFA}, {FL_OFF - FB_OFF}, v29")
    I(f"s_lshl_b32 s{S_T0}, s{S_NI}, 4"); I(f"s_add_u32 s{S_T0}, s{S_T0}, s{S_MI}"); I(f"s_lshl_b32 s{S_SP}, s{S_T0}, 14")
    I("v_lshlrev_b32 v25, 4, v2")
    g.srd(S_X, 4, M*K*2)
    stamp_setup()
    C("A DMA offsets: (m0+64b+8j+(l>>3))*2048 + (((l&7)^((4(j&1)+(l>>4))&7))*16) - (j%4)*1024")
    I(f"s_lshl_b32 s{S_T0}, s{S_T2}, 6"); I(f"s_lshl_b32 s{S_T1}, s{S_MI}, 8"); I(f"s_add_u32 s{S_T0}, s{S_T0}, s{S_T1}"); I(f"s_lshl_b32 s{S_T0}, s{S_T0}, 11")
    I("v_lshrrev_b32 v11, 3, v2"); I("v_lshlrev_b32 v11, 11, v11"); I(f"v_add_u32 v11, s{S_T0}, v11")
    I("v_and_b32 v12, 7, v2"); I("v_lshrrev_b32 v13, 4, v2"); I("v_xor_b32 v12, v12, v13"); I("v_xor_b32 v13, 4, v12")
    I("v_lshl_add_u32 v12, v12, 4, v11"); I("v_lshl_add_u32 v13, v13, 4, v11")
    for j in range(8): I(f"v_add_u32 v{VOA+j}, {8*j*2048 - (j%4)*1024}, v{12 + (j&1)}")
    I(f"s_lshl_b32 s{S_MA}, s{S_T2}, 13")
def flags_to_vgpr():
    I("s_waitcnt lgkmcnt(0)")
    I(f"v_mov_b32 v{VF0}, 0")
    for l in range(16): I(f"v_writelane_b32 v{VF0}, s{S_F+l}, {l}")
    I(f"v_add_u32 v{VF0}, {FKEY:#x}, v{VF0}")

keep(0)
I(f"s_cmp_ge_u32 s2, {NWG}")
I("s_cbranch_scc1 L_end")
I("s_load_dwordx4 s[4:7], s[0:1], 0")
I("s_load_dwordx4 s[8:11], s[0:1], 16")
I("s_load_dwordx4 s[12:15], s[0:1], 32")
I("s_load_dwordx2 s[42:43], s[0:1], 56")
I("v_lshrrev_b32 v1, 6, v0")
I("v_and_b32 v2, 63, v0")
I(f"s_and_b32 s{S_XCD}, s2, 7")
I(f"v_readfirstlane_b32 s{S_WV}, v1")
I(f"s_lshr_b32 s{S_SLOT}, s2, 3")
I("v_and_b32 v3, 31, v2"); I("v_lshrrev_b32 v4, 5, v2")
I(f"s_and_b32 s{S_P}, s{S_WV}, 3")
I(f"s_cmp_ge_u32 s{S_SLOT}, 28")
I("s_cbranch_scc1 L_help")
I(f"s_and_b32 s{S_MI}, s{S_XCD}, 1"); I(f"s_lshl_b32 s{S_MI}, s{S_MI}, 2")
I(f"s_and_b32 s{S_T2}, s{S_SLOT}, 3"); I(f"s_add_u32 s{S_MI}, s{S_MI}, s{S_T2}")
I(f"s_lshr_b32 s{S_NI}, s{S_XCD}, 1"); I(f"s_mul_i32 s{S_NI}, s{S_NI}, 7")
I(f"s_lshr_b32 s{S_T2}, s{S_SLOT}, 2"); I(f"s_add_u32 s{S_NI}, s{S_NI}, s{S_T2}")
C("panel columns: two 64-column pieces of the 256-column block ni>>1: pieces (0,3) for even ni, (1,2) for odd ni")
if opt["il"]:
    I(f"s_and_b32 s74, s{S_NI}, 1"); I("s_lshl_b32 s75, s74, 1"); I("s_sub_u32 s75, 2, s75"); I("s_lshl_b32 s75, s75, 4")
    I(f"s_lshr_b32 s{S_T0}, s{S_NI}, 1"); I(f"s_lshl_b32 s{S_T0}, s{S_T0}, 2"); I(f"s_add_u32 s74, s74, s{S_T0}"); I("s_lshl_b32 s74, s74, 4")
else:
    I("s_mov_b32 s75, 0"); I(f"s_lshl_b32 s74, s{S_NI}, 5")
I("v_lshrrev_b32 v14, 4, v3"); I("v_mul_u32_u24 v14, s75, v14"); I("v_add3_u32 v14, v14, v3, s74")
C("v5 = q offset (64*mi+16p+8h)*14336 + 16*quad ; v6 = scale offset ; v7 = act offset (chunk E; L = +8 steps)")
I(f"s_lshl_b32 s{S_T2}, s{S_MI}, 2"); I(f"s_add_u32 s{S_T2}, s{S_T2}, s{S_P}")
I(f"s_mul_i32 s{S_T0}, s{S_T2}, {16*N*4}")
I(f"v_mul_u32_u24 v5, {8*N*4}, v4"); I("v_lshl_add_u32 v5, v14, 4, v5"); I(f"v_add_u32 v5, s{S_T0}, v5")
I(f"s_lshr_b32 s{S_T0}, s{S_T2}, 1"); I(f"s_mul_i32 s{S_T0}, s{S_T0}, {N*2}")
I("v_lshlrev_b32 v6, 3, v14"); I(f"v_add_u32 v6, s{S_T0}, v6")
I(f"s_lshl_b32 s{S_T0}, s{S_T2}, 5"); I("v_lshlrev_b32 v7, 4, v4"); I(f"v_add_u32 v7, s{S_T0}, v7")
C("v8 = image offset in chunk: (2p+h)*2048 + (i&1)*1024 + (((i>>1)^(4*(i&1)))*16)  (+ c*256)")
I(f"s_cmp_lt_u32 s{S_WV}, 4")
I("s_cbranch_scc1 L_cons")

I("s_waitcnt lgkmcnt(0)")
g.srd(S_Q, 6, K*N*4)
Q = []
def ldq(st, e):
    I(f"s_mov_b32 s{S_T0}, {(e + 512*st)*N*4}")
    I(f"buffer_load_dwordx4 v[{VQ[st]+4*e}:{VQ[st]+4*e+3}], v{VAD[st][0]}, s[{S_Q}:{S_Q+3}], s{S_T0} offen nt"); Q.append(("q", st, e))
def small(st):
    R = VR[st]
    I(f"s_mov_b32 s{S_T0}, {st*16*N*2}")
    I(f"buffer_load_dwordx2 v[{R}:{R+1}], v{VAD[st][1]}, s[{S_S}:{S_S+3}], s{S_T0} offen" + (" nt" if opt["sznt"] else ""))
    I(f"buffer_load_dwordx2 v[{R+2}:{R+3}], v{VAD[st][1]}, s[{S_Z}:{S_Z+3}], s{S_T0} offen" + (" nt" if opt["sznt"] else ""))
    I(f"buffer_load_dwordx4 v[{R+4}:{R+7}], v{VAD[st][2]}, s[{S_ACT}:{S_ACT+3}], 0 offen offset:{st*1024}" + (" nt" if opt["actnt"] else "")); Q.extend([("s", st, 0)]*3)
def wait_for(pred):
    last = max([i for i, t in enumerate(Q) if pred(t)], default=-1)
    if last >= 0: I(f"s_waitcnt vmcnt({len(Q)-1-last})")
    del Q[:last+1]
for e in range(8):
    if e == opt["smpos"]:
        g.srd(S_S, 8, 32*N*2); g.srd(S_Z, 10, 32*N*2); g.srd(S_ACT, 12, K*2); small(0)
    ldq(0, e)
I("s_barrier")
I(f"s_sub_u32 s{S_T2}, s{S_WV}, 5"); I(f"s_lshl_b32 s{S_T2}, s{S_T2}, 1"); I(f"s_and_b32 s{S_T2}, s{S_T2}, 2")
common_setup()
I(f"s_lshl_b32 s{S_T0}, s{S_NI}, 18"); I(f"v_add_u32 v24, s{S_T0}, v25")
C("v8 = image offset in chunk: (2p+h)*2048 + (i&1)*1024 + (((i>>1)^(4*(i&1)))*16)  (+ c*256)")
I(f"s_lshl_b32 s{S_T0}, s{S_P}, 12")
I("v_lshlrev_b32 v8, 11, v4"); I(f"v_add_u32 v8, s{S_T0}, v8")
I("v_and_b32 v9, 1, v3"); I("v_lshl_add_u32 v8, v9, 10, v8"); I("v_lshlrev_b32 v9, 2, v9")
I("v_lshrrev_b32 v10, 1, v3"); I("v_xor_b32 v10, v10, v9"); I("v_lshl_add_u32 v8, v10, 4, v8")
flags_to_vgpr()
def unpack(st):
    R = VR[st]; VSC = VSCs[st]
    wait_for(lambda t: t[0] == "s" and t[1] == st)
    for d in range(4):
        I(f"v_lshlrev_b32 v{VSC+2*d}, 16, v{R+d}"); I(f"v_and_b32 v{VSC+2*d+1}, 0xffff0000, v{R+d}")
    for d in range(4):
        I(f"v_lshlrev_b32 v{VSC+8+2*d}, 16, v{R+4+d}"); I(f"v_and_b32 v{VSC+9+2*d}, 0xffff0000, v{R+4+d}")
    for T in range(4): I(f"v_mul_f32 v{VSC+4+T}, -v{VSC+4+T}, v{VSC+T}")
def conv_row(st, e, after_wait=None):
    wait_for(lambda t: t == ("q", st, e))
    if after_wait: after_wait()
    q = VQ[st] + 4*e; o = VOs[st]; VSC = VSCs[st]
    for c in range(4): I(f"v_cvt_f32_i32 v{q+c}, v{q+c}")
    for c in range(4): I(f"v_fma_f32 v{q+c}, v{q+c}, v{VSC+c}, v{VSC+4+c}")
    for c in range(4): I(f"v_mul_f32 v{q+c}, v{q+c}, v{VSC+8+e}")
    if e & 1:
        for c in range(4): I(f"v_cvt_pk_bf16_f32 v{o+4*c+e//2}, v{q-4+c}, v{q+c}")
C("dequantise: w = bf16(((float)q*s - z*s) * a[k]), row by row as the loads land")
VO = 32
I(f"v_mov_b32 v{VCN}, {CNT}"); I(f"v_mov_b32 v{VTMP}, 1")
unpack(0)
for e in range(8): conv_row(0, e)
for c in range(4 if opt["est"] else 0): I(f"buffer_store_dwordx4 v[{VO+4*c}:{VO+4*c+3}], v8, s[{S_WB}:{S_WB+3}], s{S_SP} offen offset:{c*256} sc1")
for c in range(4): I(f"ds_write_b128 v8, v[{VO+4*c}:{VO+4*c+3}] offset:{BOFF + c*256}")
I("s_waitcnt lgkmcnt(0)")
keep(1)
I("s_barrier")
I("s_waitcnt vmcnt(0)")
keep(2)
I("s_mov_b64 exec, 1")
I(f"ds_add_rtn_u32 v{VTMP+1}, v{VCN}, v{VTMP}")
I("s_waitcnt lgkmcnt(0)")
I(f"v_readfirstlane_b32 s{S_T0}, v{VTMP+1}")
I(f"s_cmp_lg_u32 s{S_T0}, 3")
I("s_cbranch_scc1 L_nf0")
I(f"s_lshl_b32 s{S_T1}, 1, s{S_MI}")
I(f"s_mov_b32 exec_lo, s{S_T1}")
I(f"buffer_store_dword v{VF0}, v{VFA}, s[{S_WB}:{S_WB+3}], 0 offen sc1")
g.LBL("L_nf0")
I("s_mov_b64 exec, -1")
if opt["pdel"]: I("s_barrier")
I(f"s_mov_b32 s{S_STG}, {STG}")
I(f"s_mov_b32 s{S_U}, 2")
I(f"s_cmp_eq_u32 s{S_WV}, 4")
I("s_cbranch_scc1 L_bload")
I(f"s_cmp_eq_u32 s{S_WV}, 7")
I("s_cbranch_scc1 L_copy")
C("waves 5,6: A tiles")
I(f"s_lshl_b32 s{S_OA}, s{S_MI}, 7"); I(f"s_add_u32 s{S_OA}, s{S_OA}, 1024"); ld_A(16)
g.LBL("L_aloop")
step_of_pos(); next_stage(); I(f"s_lshl_b32 s{S_OA}, s{S_CS}, 7"); ld_A(16)
I("s_waitcnt vmcnt(16)")
I("s_barrier")
I(f"s_add_u32 s{S_U}, s{S_U}, 1")
I(f"s_cmp_lt_u32 s{S_U}, 16")
I("s_cbranch_scc1 L_aloop")
I("s_waitcnt vmcnt(0)")
I("s_barrier")
flush_keeps([0, 1, 2])
I("s_endpgm")

g.LBL("L_copy")
C("wave 7: copy the L image (stage 1, complete at B_1) out to ws, publish it, end")
I(f"v_add_u32 v26, {STG + BOFF}, v25")
I(f"s_add_u32 s{S_SP}, s{S_SP}, {8*16384}")
I("s_barrier")
for j in range(16): I(f"ds_read_b128 v[{128+4*j}:{131+4*j}], v26 offset:{j*1024}")
I("s_waitcnt lgkmcnt(0)")
I("s_barrier")
for jj in range(4):
    for j in range(4): I(f"buffer_store_dwordx4 v[{128+16*jj+4*j}:{131+16*jj+4*j}], v25, s[{S_WB}:{S_WB+3}], s{S_SP} offen offset:{j*1024} sc1")
    I(f"s_add_u32 s{S_SP}, s{S_SP}, 4096")
    if jj == 1: I("s_barrier")
I("s_barrier")
I("s_waitcnt vmcnt(0)")
I(f"s_lshl_b32 s{S_T1}, 256, s{S_MI}")
I(f"s_mov_b32 exec_lo, s{S_T1}"); I("s_mov_b32 exec_hi, 0")
I(f"buffer_store_dword v{VF0}, v{VFA}, s[{S_WB}:{S_WB+3}], 0 offen sc1")
I("s_mov_b64 exec, -1")
flush_keeps([0, 1, 2])
I("s_endpgm")

g.LBL("L_bload")
C("wave 4: S_U next position to issue, S_PB last barrier passed, S_FL mask of published steps")
I(f"s_mov_b32 s{S_PB}, 0"); I(f"s_mov_b32 s{S_FL}, 0"); I(f"s_mov_b32 s{S_NP}, 0")
if opt["sp"]:
    C("first looks at the flags go through the scalar path (they do not queue behind the vector loads)")
    step_of_pos()
    I("s_mov_b32 s81, 0")
    I("s_mov_b64 exec, 0xffff")
    g.LBL("L_spoll")
    I(f"s_load_dwordx16 s[20:35], s[82:83], {FL_OFF - FB_OFF} glc")
    I("s_waitcnt lgkmcnt(0)")
    for l in range(8): I(f"v_writelane_b32 v28, s{20+l}, {l}")
    I(f"v_cmp_eq_u32 vcc, v28, v{VF0}")
    I(f"s_and_b32 s{S_FL}, vcc_lo, 0xff")
    I(f"s_bitcmp1_b32 s{S_FL}, s{S_CS}")
    I("s_cbranch_scc1 L_spx")
    I("s_add_u32 s81, s81, 1"); I(f"s_cmp_lt_u32 s81, {opt['sp']}"); I("s_cbranch_scc1 L_spoll")
    g.LBL("L_spx")
    I("s_mov_b64 exec, -1")
    pass
g.LBL("L_sm")
I(f"s_mov_b32 s{S_PEND}, 0")
I(f"s_cmp_ge_u32 s{S_U}, 16")
I("s_cbranch_scc1 L_trybar")
step_of_pos()
I(f"s_bitcmp1_b32 s{S_FL}, s{S_CS}")
I("s_cbranch_scc0 L_dopoll")
I(f"s_add_u32 s{S_T0}, s{S_PB}, 2")
I(f"s_cmp_gt_u32 s{S_U}, s{S_T0}")
I("s_cbranch_scc1 L_trybar")
keep_if(S_U, 2, 5); keep_if(S_U, 8, 6)
next_stage()
I(f"s_lshl_b32 s{S_OB}, s{S_CS}, 14")
for jj in range(4):
    I(f"s_add_u32 m0, s{S_STG}, {BOFF + jj*4096}")
    if jj: I(f"s_add_u32 s{S_OB}, s{S_OB}, 4096")
    else: I("s_nop 0")
    for j in range(4): I(f"buffer_load_dwordx4 v24, s[{S_WB}:{S_WB+3}], s{S_OB} offen offset:{j*1024}" + (" sc1" if opt["bsc"] else "") + " lds")
I(f"s_add_u32 s{S_U}, s{S_U}, 1")
I("s_branch L_sm")
g.LBL("L_dopoll")
I("s_mov_b64 exec, 0xffff")
I(f"buffer_load_dword v28, v{VFA}, s[{S_WB}:{S_WB+3}], 0 offen sc1")
I(f"s_add_u32 s{S_NP}, s{S_NP}, 1")
I(f"s_mov_b32 s{S_PEND}, 1")
if opt["npoll"]:
    I(f"s_cmp_le_u32 s{S_NP}, {opt['npoll']}")
    I("s_cbranch_scc1 L_nobar")
g.LBL("L_trybar")
I(f"s_sub_u32 s{S_T0}, s{S_U}, s{S_PB}")
I(f"s_cmp_le_u32 s{S_T0}, 1")
I("s_cbranch_scc1 L_nobar")
I(f"s_lshl_b32 s{S_T0}, s{S_T0}, 1"); I(f"s_add_u32 s{S_T0}, s{S_T0}, s{S_PEND}")
I(f"s_cmp_eq_u32 s{S_T0}, 6"); I("s_cbranch_scc1 L_w16")
I(f"s_cmp_eq_u32 s{S_T0}, 7"); I("s_cbranch_scc1 L_w17")
I(f"s_cmp_eq_u32 s{S_T0}, 5"); I("s_cbranch_scc1 L_w1")
I("s_waitcnt vmcnt(0)")
g.LBL("L_w1")
I("s_waitcnt vmcnt(1)")
g.LBL("L_w16")
I("s_waitcnt vmcnt(16)")
g.LBL("L_w17")
I("s_waitcnt vmcnt(17)")
I("s_barrier")
I(f"s_add_u32 s{S_PB}, s{S_PB}, 1")
I(f"s_cmp_ge_u32 s{S_PB}, 15")
I("s_cbranch_scc1 L_bdone")
g.LBL("L_nobar")
I(f"s_cmp_eq_u32 s{S_PEND}, 0")
I("s_cbranch_scc1 L_sm")
I(f"s_cmp_lt_u32 s{S_NP}, 0x40000")
I("s_cbranch_scc1 L_waitpoll")
I(f"s_mov_b32 s{S_FL}, 0xffff")
g.LBL("L_waitpoll")
I("s_waitcnt vmcnt(0)")
g.LBL("L_gotpoll")
I(f"v_cmp_eq_u32 vcc, v28, v{VF0}")
I(f"s_or_b32 s{S_FL}, s{S_FL}, vcc_lo")
I("s_mov_b64 exec, -1")
I("s_branch L_sm")
g.LBL("L_bdone")
C("every sharer has published, hence read the base words: re-arm this WG's two words (base := flag value)")
I(f"s_lshl_b32 s{S_T1}, 0x101, s{S_MI}")
I(f"s_mov_b32 exec_lo, s{S_T1}"); I("s_mov_b32 exec_hi, 0")
I(f"buffer_store_dword v{VF0}, v29, s[{S_WB}:{S_WB+3}], 0 offen sc1")
I("s_mov_b64 exec, -1")
if opt["stamps"]: I("s_waitcnt lgkmcnt(0)"); I(f"s_mov_b32 s98, s{S_NP}" if not opt["sp"] else "s_mov_b32 s98, s81")
flush_keeps([0, 1, 2, 5, 6, 7])
I("s_endpgm")

g.LBL("L_cons")
if opt["tm"] >= 0: I("s_waitcnt lgkmcnt(0)"); I("s_mov_b32 s81, s100")
I("v_mov_b32 v15, 0"); I(f"v_mov_b32 v117, {CNT}")
I("ds_write_b32 v117, v15")
I("v_mov_b32 v100, v5"); I("v_mov_b32 v101, v6"); I("v_mov_b32 v102, v7")
if opt["half"]:
    I(f"s_and_b32 s{S_T0}, s{S_MI}, 1"); I(f"s_lshl_b32 s{S_T0}, s{S_T0}, 30"); I(f"v_add_u32 v100, s{S_T0}, v100")
I(f"s_lshl_b32 s{S_T0}, s{S_P}, 12")
I("v_lshlrev_b32 v8, 11, v4"); I(f"v_add_u32 v8, s{S_T0}, v8")
I("v_and_b32 v9, 1, v3"); I("v_lshl_add_u32 v8, v9, 10, v8"); I("v_lshlrev_b32 v9, 2, v9")
I("v_lshrrev_b32 v10, 1, v3"); I("v_xor_b32 v10, v10, v9"); I("v_lshl_add_u32 v8, v10, 4, v8")
I(f"v_add_u32 v103, {STG}, v8")
C("A DMA offsets")
I(f"s_lshl_b32 s{S_T0}, s{S_P}, 6"); I(f"s_lshl_b32 s{S_T1}, s{S_MI}, 8"); I(f"s_add_u32 s{S_T0}, s{S_T0}, s{S_T1}"); I(f"s_lshl_b32 s{S_T0}, s{S_T0}, 11")
I("v_lshrrev_b32 v11, 3, v2"); I("v_lshlrev_b32 v11, 11, v11"); I(f"v_add_u32 v11, s{S_T0}, v11")
I("v_and_b32 v12, 7, v2"); I("v_lshrrev_b32 v13, 4, v2"); I("v_xor_b32 v12, v12, v13"); I("v_xor_b32 v13, 4, v12")
I("v_lshl_add_u32 v12, v12, 4, v11"); I("v_lshl_add_u32 v13, v13, 4, v11")
for j in range(8): I(f"v_add_u32 v{VOA+j}, {8*j*2048 - (j%4)*1024}, v{12 + (j&1)}")
I(f"s_lshl_b32 s{S_MA}, s{S_P}, 13")
I("s_waitcnt lgkmcnt(0)")
g.srd(S_X, 4, M*K*2); g.srd(S_Q, 6, K*N*4); g.srd(S_S, 8, 32*N*2); g.srd(S_Z, 10, 32*N*2); g.srd(S_ACT, 12, K*2)
I(f"s_mov_b32 s{S_STG}, 0"); I(f"s_lshl_b32 s{S_OA}, s{S_MI}, 7")
I("s_barrier")
Q[:] = []
LH = opt["lh"]
if opt["a0f"]: ld_A(); Q.extend([("A", 0, 0)]*8)
if opt["smL"]: small(1)
for e in range(LH): ldq(1, e)
if not opt["a0f"]: ld_A(); Q.extend([("A", 0, 0)]*8)
stamp_setup()
VA0 = 104; VOUT = 116
VS = [104, 108, 112]
CUR = [0]
I("v_lshrrev_b32 v3, 4, v2"); I("v_and_b32 v4, 15, v2")
I("v_lshlrev_b32 v5, 7, v4"); I(f"v_add_u32 v5, s{S_MA}, v5"); I("v_bfe_u32 v6, v4, 1, 3")
for t in range(2):
    I(f"v_add_u32 v10, {4*t}, v3"); I("v_xor_b32 v10, v10, v6"); I(f"v_lshl_add_u32 v{VA0+t}, v10, 4, v5")
I("v_lshlrev_b32 v10, 11, v3"); I(f"v_add_u32 v10, {BOFF}, v10")
I(f"v_lshl_add_u32 v{VA0+2}, v4, 4, v10")
I("v_xor_b32 v11, 4, v4"); I(f"v_lshl_add_u32 v{VA0+3}, v11, 4, v10")
for st_ in (1, 2):
    for t in range(4): I(f"v_add_u32 v{VS[st_]+t}, {st_*STG}, v{VA0+t}")
I(f"s_lshl_b32 s{S_T0}, s{S_P}, 6"); I(f"s_lshl_b32 s{S_T1}, s{S_MI}, 8"); I(f"s_add_u32 s{S_T0}, s{S_T0}, s{S_T1}")
I(f"s_mul_i32 s{S_T0}, s{S_T0}, {N*2}"); I(f"s_lshl_b32 s{S_T1}, s74, 3"); I(f"s_add_u32 s{S_T0}, s{S_T0}, s{S_T1}")
I(f"v_mul_u32_u24 v10, {4*N*2}, v3"); I("v_lshl_add_u32 v10, v4, 4, v10")
I("v_lshrrev_b32 v11, 3, v4"); I("v_mul_u32_u24 v11, s75, v11"); I("v_lshl_add_u32 v10, v11, 3, v10"); I(f"v_add_u32 v{VOUT}, s{S_T0}, v10")
g.srd(S_OUT, 14, M*N*2)
ACC = 128
def acc(a, T): return ACC + (a * 8 + T) * 4
FS = [8, 56]
def fA(s, a): return FS[s] + 4 * a
def fB(s, T): return FS[s] + 16 + 4 * T
def rdA(s, a, t): I(f"ds_read_b128 v[{fA(s,a)}:{fA(s,a)+3}], v{VS[CUR[0]]+t} offset:{a*2048}")
def rdB(s, T, t): I(f"ds_read_b128 v[{fB(s,T)}:{fB(s,T)+3}], v{VS[CUR[0]]+2+(T>>2)} offset:{t*8192 + T*256}")
def mfma(s, a, T, first=False):
    d = acc(a, T)
    I(f"v_mfma_f32_16x16x32_bf16 v[{d}:{d+3}], v[{fA(s,a)}:{fA(s,a)+3}], v[{fB(s,T)}:{fB(s,T)+3}], " + ("0" if first else f"v[{d}:{d+3}]"))
MORD = []
for a in range(4): MORD += [(a, T) for T in (range(8) if a % 2 == 0 else range(7, -1, -1))]
def reads(s, t):
    return [lambda: rdA(s,0,t)] + [(lambda T: (lambda: rdB(s,T,t)))(T) for T in range(8)] + [(lambda a: (lambda: rdA(s,a,t)))(a) for a in range(1,4)]
BP = opt["barpos"]
def half0(first):
    I("s_waitcnt lgkmcnt(0)")
    rd = reads(1, 1)
    for idx, (a, T) in enumerate(MORD):
        mfma(0, a, T, first)
        if idx < len(rd): rd[idx]()
        if idx == 16: next_stage()
        if idx == 18: I(f"s_add_u32 s{S_U}, s{S_U}, 1")
        if idx == 20:
            for tt in range(4): I(f"v_add_u32 v{VA+tt}, s{S_STG}, v{VA0+tt}")
I("s_barrier")
if not opt["smL"]: small(1)
for e in range(LH, 8): ldq(1, e)
wait_for(lambda t: t[0] == "A")
keep(1)
if opt["stamps"]: I("s_memtime s[64:65]")
C("position 0 with one fragment set (the other registers receive the L chunk)")
for t in range(2):
    for r in reads(0, t): r()
    I("s_waitcnt lgkmcnt(0)")
    for (a, T) in MORD: mfma(0, a, T, t == 0)
if opt["pdel"]: I("s_barrier")
unpack(1)
for e in range(8): conv_row(1, e)
for c in range(4): I(f"ds_write_b128 v103, v[{VO+4*c}:{VO+4*c+3}] offset:{BOFF + c*256}")
keep(0)
if opt["prio"]: I(f"s_setprio {opt['prio']}")
I(f"s_mov_b32 s{S_U}, 0")
CUR[0] = 1
I("s_waitcnt lgkmcnt(0)")
I("s_barrier")
keep(4)
for r in reads(0, 0): r()
if True:
    R = opt["R"]; assert R == 2
    PH = {0: [[0,1],[2,3]], 1: [[0,1],[2],[3]], 2: [[0,1,2],[3]]}[opt["ph"]]
    def part_a(pos):
        CUR[0] = pos % 3
        rd = reads(0, 0)
        for idx, (a, T) in enumerate(MORD):
            if idx <= BP: continue
            mfma(1, a, T)
            if idx - BP - 1 < len(rd): rd[idx-BP-1]()
    def part_b(pos, extra={}):
        CUR[0] = pos % 3
        I("s_waitcnt lgkmcnt(0)")
        rd = reads(1, 1)
        for idx, (a, T) in enumerate(MORD):
            mfma(0, a, T)
            if idx < len(rd): rd[idx]()
            if idx in extra: I(extra[idx])
        I("s_waitcnt lgkmcnt(0)")
        for idx, (a, T) in enumerate(MORD):
            if idx > BP: break
            if idx == BP: I("s_barrier")
            mfma(1, a, T)
    if opt["unr"] == 0:
        for pos in range(1, 14):
            if pos > 1: part_a(pos)
            part_b(pos)
            if opt["cyc"]:
                if pos == 4: I("s_memtime s[64:65]"); keep(5)
                if pos == 12: I("s_memtime s[60:61]"); keep(7)
            else:
                if pos == 1: keep(5)
                if pos == 8: keep(7)
    else:
        part_b(1)
        if not opt["cyc"]: keep(5)
        g.LBL("L_cloop")
        if opt["cyc"]:
            I(f"s_cmp_lg_u32 s{S_U}, 1"); I("s_cbranch_scc1 L_cy1"); I("s_memtime s[64:65]"); keep(5); g.LBL("L_cy1")
        elif opt["stamps"]: keep_if(S_U, 2, 7)
        for pos in (2, 3, 4):
            part_a(pos)
            part_b(pos, {16: f"s_add_u32 s{S_U}, s{S_U}, 1", 17: f"s_cmp_lt_u32 s{S_U}, 4"} if pos == 4 else {})
        I("s_cbranch_scc1 L_cloop")
        if opt["cyc"]: I("s_memtime s[60:61]"); keep(7); I("s_waitcnt lgkmcnt(0)")
    g.LBL("L_ctail")
    C("last positions are resident together: finish some row tiles early and store them under the remaining MFMAs")
    VP = [VS[14 % 3], VS[15 % 3]]
    LQ = []
    def t_read(kind, s_, slot, idx_, pos, t):
        base = VP[pos]
        if kind == "A": I(f"ds_read_b128 v[{fA(s_,slot)}:{fA(s_,slot)+3}], v{base+t} offset:{idx_*2048}")
        else: I(f"ds_read_b128 v[{fB(s_,idx_)}:{fB(s_,idx_)+3}], v{base+2+(idx_>>2)} offset:{t*8192 + idx_*256}")
        LQ.append((kind, s_, slot if kind == "A" else idx_))
    def t_need(ids):
        last = max([i for i, x in enumerate(LQ) if x in ids], default=-1)
        if last >= 0:
            I(f"s_waitcnt lgkmcnt({min(15, len(LQ)-1-last)})"); del LQ[:last+1]
    subs = [(tiles, pos, t) for tiles in PH for pos in range(R) for t in range(2)]
    def sub_reads(k):
        tiles, pos, t = subs[k]; s_ = k & 1
        return [("A", s_, 0, tiles[0], pos, t)] + [("B", s_, 0, T, pos, t) for T in range(8)] + [("A", s_, sl, tiles[sl], pos, t) for sl in range(1, len(tiles))]
    TMP = [fA(0,3), fA(1,3), 124, 120, 0, 4] + ([fA(0,2), fA(1,2)] if opt["ph"] != 2 else [])
    ne = [0]
    def epi_ops(a):
        ops = []
        for r in range(4):
            d = TMP[ne[0] % len(TMP)]; ne[0] += 1
            for p in range(4): ops.append(f"v_cvt_pk_bf16_f32 v{d+p}, v{acc(a,2*p)+r}, v{acc(a,2*p+1)+r}")
            ops.append(f"s_mov_b32 s{S_T0}, {(16*a+r)*N*2}")
            ops.append(f"buffer_store_dwordx4 v[{d}:{d+3}], v{VOUT}, s[{S_OUT}:{S_OUT+3}], s{S_T0} offen{OSTF}")
        return ops
    C("rest of the last ordinary position")
    nxt = sub_reads(0)
    for idx, (a, T) in enumerate(MORD):
        if idx <= BP: continue
        mfma(1, a, T)
        if nxt: t_read(*nxt.pop(0))
    assert not nxt
    seq = []
    NS = len(subs)
    for k, (tiles, pos, t) in enumerate(subs):
        if opt["merge"] and k == NS - 2 and len(tiles) == 2:
            seq += [(k, 0, T) for T in range(8)] + [(k+1, 0, T) for T in range(8)] + [(k, 1, T) for T in range(8)] + [(k+1, 1, T) for T in range(8)]
            break
        for sl in range(len(tiles)):
            seq += [(k, sl, T) for T in (range(8) if sl % 2 == 0 else range(7, -1, -1))]
    last_use = {}
    for i, (k, sl, T) in enumerate(seq): last_use[subs[k][0][sl]] = i
    first_of = {}
    for i, (k, sl, T) in enumerate(seq): first_of.setdefault(k, i)
    pend = []; nxt = []; stored = set()
    for i, (k, sl, T) in enumerate(seq):
        s_ = k & 1; tiles, pos, t = subs[k]
        t_need([("A", s_, sl), ("B", s_, T)])
        d = acc(tiles[sl], T)
        I(f"v_mfma_f32_16x16x32_bf16 v[{d}:{d+3}], v[{fA(s_,sl)}:{fA(s_,sl)+3}], v[{fB(s_,T)}:{fB(s_,T)+3}], v[{d}:{d+3}]")
        if first_of[k] == i and k + 1 < NS:
            assert not nxt
            nxt = sub_reads(k+1)
            if k + 1 < 2*R and (k + 1) % 2 == 0: I("s_barrier")
        nrd = 2 if (len(tiles) == 1 or (opt["merge"] and k == NS - 2)) else 1
        if first_of[k] != i or nrd == 2:
            for _ in range(nrd):
                if nxt: t_read(*nxt.pop(0))
        for a in range(4):
            if a not in stored and i >= last_use[a] + 8:
                pend += epi_ops(a); stored.add(a)
        n = opt["eper"] if not nxt else 1
        for o in pend[:n]: I(o)
        pend = pend[n:]
    keep(2)
    if opt["stamps"] and not opt["cyc"]: I("s_memtime s[60:61]")
    for o in pend: I(o)
    I("s_nop 7")
    for a in range(4):
        if a not in stored:
            for o in epi_ops(a): I(o)
if opt["stamps"]:
    I("s_waitcnt vmcnt(0)"); keep(3); I("s_waitcnt lgkmcnt(0)")
    I("s_sub_u32 s96, s60, s64")
    flush_keeps([0, 1, 2, 3, 4, 5, 6, 7])
    if opt["tm"] >= 0:
        C("diagnostic build only: stretch the launch to mult * (event - start)")
        I(f"s_sub_u32 s82, s{kreg(opt['tm'])}, s81"); I(f"s_mul_i32 s82, s82, {opt['mult']}"); I("s_min_u32 s82, s82, 50000")
        g.LBL("L_spin")
        I("s_sleep 4"); I("s_memrealtime s[60:61]"); I("s_waitcnt lgkmcnt(0)")
        I("s_sub_u32 s83, s60, s81"); I("s_cmp_lt_u32 s83, s82"); I("s_cbranch_scc1 L_spin")
I("s_endpgm")

g.LBL("L_help")
if opt["cpf"]:
    C("pull the kernel's code into this die's L2 (range-checked)")
    I("s_getpc_b64 s[56:57]")
    g.LBL("L_pc")
    I(f"s_sub_u32 s56, s56, L_pc-{KN}"); I("s_subb_u32 s57, s57, 0")
    I(f"s_mov_b32 s58, L_codeend-{KN}"); I("s_mov_b32 s59, 0x00020000")
    I("v_lshlrev_b32 v10, 7, v0")
    if opt["cpf"] == 2:
        I(f"s_cmp_eq_u32 s{S_SLOT}, 28"); I("s_cselect_b32 s58, s58, 0")
    if opt["cpf"] == 3:
        C("each of the die's four helpers takes every fourth line")
        I("v_lshlrev_b32 v10, 9, v0"); I(f"s_and_b32 s{S_T0}, s{S_SLOT}, 3"); I(f"s_lshl_b32 s{S_T0}, s{S_T0}, 7"); I(f"v_add_u32 v10, s{S_T0}, v10")
    I("buffer_load_dword v9, v10, s[56:59], 0 offen")
I(f"s_sub_u32 s{S_SLOT}, s{S_SLOT}, 28")
C("pass 0: tile mi=4*(xcd&1)+hs, rows 64*(wave&3)+lane, line mi (waves 0-3) / 8+mi (waves 4-7)")
I(f"s_and_b32 s{S_MI}, s{S_XCD}, 1"); I(f"s_lshl_b32 s{S_MI}, s{S_MI}, 2"); I(f"s_add_u32 s{S_MI}, s{S_MI}, s{S_SLOT}")
I(f"s_lshl_b32 s{S_T0}, s{S_MI}, 8"); I(f"s_lshl_b32 s{S_T1}, s{S_P}, 6"); I(f"s_add_u32 s{S_T0}, s{S_T0}, s{S_T1}")
I(f"s_lshl_b32 s{S_T0}, s{S_T0}, 11")
I("v_lshlrev_b32 v5, 11, v2"); I(f"v_add_u32 v5, s{S_T0}, v5")
I(f"s_lshr_b32 s{S_T0}, s{S_WV}, 2"); I(f"s_lshl_b32 s{S_T0}, s{S_T0}, 3"); I(f"s_add_u32 s{S_T0}, s{S_T0}, s{S_MI}"); I(f"s_lshl_b32 s{S_OA}, s{S_T0}, 7")
if not opt["hm"]:
    C("passes 1,2: rows 1024*(xcd&1) + 256*(xcd>>1) + 64*hs + 8*wave + (l>>3), line (l&7), then +8")
    I(f"s_and_b32 s{S_T0}, s{S_XCD}, 1"); I(f"s_lshl_b32 s{S_T0}, s{S_T0}, 10")
    I(f"s_lshr_b32 s{S_T1}, s{S_XCD}, 1"); I(f"s_lshl_b32 s{S_T1}, s{S_T1}, 8"); I(f"s_add_u32 s{S_T0}, s{S_T0}, s{S_T1}")
    I(f"s_lshl_b32 s{S_T1}, s{S_SLOT}, 6"); I(f"s_add_u32 s{S_T0}, s{S_T0}, s{S_T1}")
    I(f"s_lshl_b32 s{S_T1}, s{S_WV}, 3"); I(f"s_add_u32 s{S_T0}, s{S_T0}, s{S_T1}")
    I(f"s_lshl_b32 s{S_T0}, s{S_T0}, 11")
    I("v_lshrrev_b32 v11, 3, v2"); I("v_lshlrev_b32 v11, 11, v11"); I("v_and_b32 v12, 7, v2"); I("v_lshl_add_u32 v11, v12, 7, v11")
    I(f"v_add_u32 v11, s{S_T0}, v11")
    I("s_mov_b32 s72, 0"); I("s_mov_b32 s73, 1024")
else:
    C("passes 1,2 (each line once chip-wide, in order of need): 64 rows per helper (lane = row) of tile 4*(xcd&1)+(xcd>>1); wave w: positions w+2, w+10")
    I(f"s_and_b32 s{S_MI}, s{S_XCD}, 1"); I(f"s_lshl_b32 s{S_MI}, s{S_MI}, 2"); I(f"s_lshr_b32 s{S_T1}, s{S_XCD}, 1"); I(f"s_add_u32 s{S_MI}, s{S_MI}, s{S_T1}")
    I(f"s_lshl_b32 s{S_T0}, s{S_MI}, 8"); I(f"s_lshl_b32 s{S_T1}, s{S_SLOT}, 6"); I(f"s_add_u32 s{S_T0}, s{S_T0}, s{S_T1}"); I(f"s_lshl_b32 s{S_T2}, s{S_T0}, 11")
    I("v_lshlrev_b32 v11, 11, v2"); I(f"v_add_u32 v11, s{S_T2}, v11")
    I(f"s_add_u32 s{S_U}, s{S_WV}, 2"); step_of_pos(); I(f"s_lshl_b32 s72, s{S_CS}, 7")
    I(f"s_add_u32 s{S_U}, s{S_WV}, 10"); step_of_pos(); I(f"s_lshl_b32 s73, s{S_CS}, 7")
    I(f"s_cmp_ge_u32 s{S_WV}, 6"); I("s_cselect_b32 s73, 0x40000000, s73")
I("s_waitcnt lgkmcnt(0)")
g.srd(S_X, 4, M*K*2)
stamp_setup()
if opt["hp0"] == 2:
    I(f"s_cmp_lt_u32 s{S_WV}, 4"); I(f"s_cselect_b32 s{S_OA}, 0x40000000, s{S_OA}")
if opt["hp0"]:
    I(f"buffer_load_dword v15, v5, s[{S_X}:{S_X+3}], s{S_OA} offen")
    if opt["hdel"]: I("s_waitcnt vmcnt(0)")
    keep(3)
    I("s_barrier")
else: keep(3)
if opt["hm"] >= 2:
    I(f"s_cmp_lt_u32 s{S_WV}, {opt['hm']}"); I("s_cbranch_scc1 L_h1"); I("s_barrier"); g.LBL("L_h1")
I(f"buffer_load_dword v14, v11, s[{S_X}:{S_X+3}], s72 offen")
if opt["hm"] >= 2:
    I(f"s_cmp_ge_u32 s{S_WV}, {opt['hm']}"); I("s_cbranch_scc1 L_h2"); I("s_barrier"); g.LBL("L_h2")
if opt["hdel"]: I("s_waitcnt vmcnt(0)"); keep(1)
I("s_barrier")
I(f"buffer_load_dword v13, v11, s[{S_X}:{S_X+3}], s73 offen")
if opt["stamps"]:
    if not opt["hdel"]: I("s_waitcnt vmcnt(1)"); keep(1)
    I("s_waitcnt vmcnt(0)"); keep(2); flush_keeps([0, 1, 2, 3])
g.LBL("L_end")
I("s_endpgm")
g.LBL("L_codeend")

out = HEADER + f"""; Launch geometry (generated by my generator script gen28.py)
; @launch grid=({NWG},1,1) block=(512,1,1) lds={LDS_BYTES}
.amdgcn_target "amdgcn-amd-amdhsa--gfx950"
.text
""" + kernel_text(KN, g.text()) + """.section .rodata,"a"
""" + kd(KN, 256, 102)
open(sys.argv[1], "w").write(out)
print(LDS_BYTES, len(g.L))
```
